```python
import torch

def _softmax(x, axis=-1):
    return torch.softmax(x, dim=axis)
def _gelu(x):
    return torch.nn.functional.gelu(x, approximate="tanh")
def _silu(x):
    return torch.nn.functional.silu(x)
def _sigmoid(x):
    return torch.sigmoid(x)
def _layernorm(x, axis=-1, eps=1e-5):
    m = x.mean(dim=axis, keepdim=True)
    v = x.var(dim=axis, keepdim=True, unbiased=False)
    return (x - m) / torch.sqrt(v + eps)
def _scatter_add(tgt, idx, src, axis=0):
    return tgt.clone().index_add_(axis, idx, src)
def _segment_sum(src, seg, n):
    out = torch.zeros((n,) + src.shape[1:], dtype=src.dtype)
    return out.index_add_(0, seg, src)
def _pad(x, pw):
    flat = tuple(v for pair in reversed(pw) for v in pair)
    return torch.nn.functional.pad(x, flat)

kernel_name = 'interleave_layers__spectral_gfnet__glu_gated_geglu__prompt'

def setup_inputs():

    _w = (lambda a: (lambda t: t.to(torch.bfloat16) if t.is_floating_point() else t)(torch.as_tensor(a)))
    def _A_setup():
        B, S, D = 1, 2048, 1024
        Df = D // 2 + 1
        return {
            "x": _w((lambda *s: torch.randn(*s, dtype=torch.bfloat16) * 0.05)(B, S, D)),
            "w_r": _w((lambda *s: torch.randn(*s, dtype=torch.bfloat16) * 0.4)(S, Df) * 0.02),
            "w_i": _w((lambda *s: torch.randn(*s, dtype=torch.bfloat16) * 0.4)(S, Df) * 0.02),
        }
    _A_in = _A_setup()

    def _B_setup():
        B, S, Dm, Df = 1, 2048, 1024, 3584
        return {
            "x": _w((lambda *s: torch.randn(*s, dtype=torch.bfloat16) * 0.05)(B, S, Dm)),
            "w_gate": _w((lambda *s: torch.randn(*s, dtype=torch.bfloat16) * 0.4)(Dm, Df) * (Dm ** -0.5)),
            "w_up": _w((lambda *s: torch.randn(*s, dtype=torch.bfloat16) * 0.4)(Dm, Df) * (Dm ** -0.5)),
            "w_down": _w((lambda *s: torch.randn(*s, dtype=torch.bfloat16) * 0.4)(Df, Dm) * (Df ** -0.5)),
        }
    _B_in = _B_setup()

    return {
        "A_x": _A_in["x"],
        "A_w_r": _A_in["w_r"],
        "A_w_i": _A_in["w_i"],
        "B_x": _B_in["x"],
        "B_w_gate": _B_in["w_gate"],
        "B_w_up": _B_in["w_up"],
        "B_w_down": _B_in["w_down"],
    }

def reference(A_x, A_w_r, A_w_i, B_x, B_w_gate, B_w_up, B_w_down):
    def _A_ref(x, w_r, w_i):
        B, S, D = x.shape
        X = (lambda x, axes=(-2,-1): torch.fft.rfft2(x.float(), dim=axes))(x, axes=(-2, -1))
        W = w_r + 1j * w_i
        X = X * W
        y = (lambda x, s, axes=(-2,-1): torch.fft.irfft2(x, s=s, dim=axes).to(torch.bfloat16))(X, (S, D), axes=(-2, -1))
        return y

    def _B_ref(x, w_gate, w_up, w_down):
        g = torch.einsum("bsd,df->bsf", x, w_gate)
        u = torch.einsum("bsd,df->bsf", x, w_up)
        h = _gelu(g) * u
        return torch.einsum("bsf,fd->bsd", h, w_down)

    x = A_x
    x = x + _A_ref(_layernorm(x, axis=-1), A_w_r, A_w_i)
    x = x + _B_ref(_layernorm(x, axis=-1), B_w_gate, B_w_up, B_w_down)
    x = x + _A_ref(_layernorm(x, axis=-1), A_w_r, A_w_i)
    x = x + _B_ref(_layernorm(x, axis=-1), B_w_gate, B_w_up, B_w_down)
    return x
```

```python
import re

TRANS = ('v_exp_f32', 'v_log_f32', 'v_rcp_f32', 'v_rsq_f32', 'v_sqrt_f32', 'v_sin_f32', 'v_cos_f32')
MFMA_PASSES = {'v_mfma_f32_32x32x16_bf16': 8, 'v_mfma_f32_16x16x32_bf16': 4, 'v_mfma_f32_16x16x16_bf16': 4,
               'v_mfma_f32_32x32x16_f16': 8, 'v_mfma_f32_16x16x32_f16': 4, 'v_mfma_f32_16x16x16_f16': 4}
_REG = re.compile(r'^(-?)(?:abs\()?([vas])(?:(\d+)|\[(\d+):(\d+)\])\)?$')


def regs_of(tok):
    tok = tok.strip()
    if tok in ('vcc', 'exec', 'm0', 'scc'):
        return {tok}
    if tok in ('vcc_lo', 'vcc_hi'):
        return {'vcc'}
    m = _REG.match(tok)
    if not m:
        return set()
    k = m.group(2)
    if m.group(3) is not None:
        return {f'{k}{m.group(3)}'}
    return {f'{k}{i}' for i in range(int(m.group(4)), int(m.group(5)) + 1)}


class Inst:
    def __init__(self, text):
        self.text = text
        code = text.split(';')[0].strip()
        parts = code.split(None, 1)
        self.op = parts[0]
        rest = parts[1] if len(parts) > 1 else ''
        ops, cur, depth = [], '', 0
        for ch in rest:
            if ch == '[':
                depth += 1
            if ch == ']':
                depth -= 1
            if ch == ',' and depth == 0:
                ops.append(cur.strip()); cur = ''
            else:
                cur += ch
        if cur.strip():
            ops.append(cur.strip())
        mods = ''
        if ops:
            sp = ops[-1].split(None, 1)
            ops[-1] = sp[0]
            mods = sp[1] if len(sp) > 1 else ''
        self.ops, self.mods = ops, mods
        op = self.op
        self.kind = 'other'
        self.dst, self.src = set(), set()
        self.lds_dma = False
        self.dpp = '_dpp' in op or 'row_' in mods or 'quad_perm' in mods
        R = [regs_of(o) for o in ops]
        if op.startswith('v_mfma'):
            self.kind = 'mfma'
            self.passes = MFMA_PASSES[op]
            self.dst = R[0]; self.sa, self.sb, self.sc = R[1], R[2], R[3]
            self.src = R[1] | R[2] | R[3]
        elif op.startswith('v_'):
            self.kind = 'valu'
            if op.startswith('v_permlane') and 'swap' in op:
                self.dst = R[0] | R[1]; self.src = R[0] | R[1]
            elif op.startswith('v_nop'):
                pass
            else:
                self.dst = set(R[0]); n = 1
                if re.match(r'v_(add|sub|subrev|addc|subb)_co', op) or op.startswith('v_div_scale') or op.startswith('v_mad_u64'):
                    self.dst |= R[1]; n = 2
                for r in R[n:]:
                    self.src |= r
                if op.startswith(('v_fmac', 'v_pk_fmac', 'v_writelane', 'v_dot2c')) or self.dpp:
                    self.src |= R[0]
                if op.startswith('v_cndmask') and len(ops) == 3:
                    self.src |= {'vcc'}
                if op.startswith('v_cmpx'):
                    self.dst |= {'exec'}
        elif op.startswith('ds_'):
            self.kind = 'ds'
            if op.startswith(('ds_read', 'ds_bpermute', 'ds_permute', 'ds_swizzle')):
                self.dst = R[0]
                for r in R[1:]:
                    self.src |= r
            else:
                for r in R:
                    self.src |= r
        elif op.startswith(('buffer_', 'global_')):
            self.kind = 'vmem'
            words = mods.split()
            if 'lds' in words or '_lds_' in op:
                self.lds_dma = True
                for r in R:
                    self.src |= r
                self.src |= {'m0'}
            elif '_load' in op:
                self.dst = R[0]
                for r in R[1:]:
                    self.src |= r
                if 'd16' in op:
                    self.src |= R[0]
            else:
                for r in R:
                    self.src |= r
                self.store_data = R[0] if op.startswith('buffer_') else R[1]
                self.wide = op.endswith(('x3', 'x4'))
        elif op.startswith('s_'):
            self.kind = 'salu'
            if op.startswith(('s_cmp', 's_cbranch', 's_branch', 's_waitcnt', 's_barrier', 's_nop', 's_setprio',
                              's_endpgm', 's_sleep', 's_bitcmp', 's_setpc')):
                for r in R:
                    self.src |= r
            else:
                self.dst = R[0] if R else set()
                for r in R[1:]:
                    self.src |= r
                if 'saveexec' in op:
                    self.dst |= {'exec'}
        self.states = 1
        if op == 's_nop':
            self.states = int(ops[0], 0) + 1

    def is_trans(self):
        return any(self.op.startswith(t) for t in TRANS)


def need(p, c):
    n = 0
    vreg = lambda s: {r for r in s if r[0] in 'va' and r != 'vcc'}
    sreg = lambda s: {r for r in s if r[0] == 's' or r == 'vcc'}
    if p.kind == 'valu':
        pv = vreg(p.dst); ps = sreg(p.dst)
        if c.kind == 'mfma' and pv & c.src:
            n = max(n, 2)
        if c.kind == 'valu':
            if p.is_trans() and pv & c.src:
                n = max(n, 1)
            if c.dpp and pv & c.src:
                n = max(n, 2)
            if c.op.startswith('v_permlane') and pv & c.src:
                n = max(n, 2)
            if c.op.startswith(('v_readlane', 'v_readfirstlane')) and pv & c.src:
                n = max(n, 1)
            if ps & c.src:
                n = max(n, 4 if c.op.startswith(('v_readlane', 'v_writelane')) else 2)
            if ('sdwa' in p.op or 'op_sel:' in p.mods) and pv & (c.src | c.dst):
                n = max(n, 1)
        if c.kind == 'vmem' and ps & c.src:
            n = max(n, 5)
        if c.kind == 'salu' and ps & c.src:
            n = max(n, 1)
        if 'exec' in p.dst and (c.kind == 'mfma' or c.dpp or c.op.startswith(('v_readlane', 'v_readfirst', 'v_writelane', 'v_permlane'))):
            n = max(n, 5)
    if p.kind == 'mfma':
        big = {4: 8, 8: 12}[p.passes]
        if c.kind == 'mfma':
            if p.dst & (c.sa | c.sb):
                n = max(n, big)
            if p.dst & c.sc and not (p.dst == c.sc and p.op == c.op):
                n = max(n, big - 2)
            elif p.dst & c.dst and not (p.dst == c.dst and p.dst == c.sc and p.op == c.op):
                n = max(n, big - 2)
        elif c.kind in ('valu', 'vmem', 'ds'):
            if p.dst & (c.src | c.dst):
                n = max(n, big)
            if c.kind == 'valu' and p.sc & c.dst:
                n = max(n, {4: 3, 8: 7}[p.passes])
    if p.kind == 'salu' and 'm0' in p.dst and c.lds_dma:
        n = max(n, 1)
    if p.kind == 'vmem' and getattr(p, 'wide', False) and c.kind in ('valu', 'mfma') and p.store_data & c.dst:
        n = max(n, 2)
    if p.kind == 'vmem' and getattr(p, 'wide', False) and c.kind in ('vmem', 'ds') and p.store_data & c.dst:
        n = max(n, 1)
    return n


WIN = 24


class Asm:
    def __init__(self):
        self.items = []
        self.nops = 0

    def raw(self, s):
        self.items.append(s)

    def label(self, name):
        self.items.append(name + ':')

    def __call__(self, text):
        for line in text.split('\n'):
            line = line.strip()
            if not line or line.startswith(';'):
                continue
            if line.endswith(':') or line.startswith('.'):
                self.items.append(line)
                continue
            c = Inst(line)
            dist, k, req = 0, len(self.items) - 1, 0
            while k >= 0 and dist < WIN:
                p = self.items[k]
                if isinstance(p, Inst):
                    if p.op in ('s_branch', 's_endpgm', 's_setpc_b64'):
                        break
                    req = max(req, need(p, c) - dist)
                    dist += p.states
                k -= 1
            while req > 0:
                n = min(req, 16)
                self.items.append(Inst(f's_nop {n - 1}'))
                self.nops += 1
                req -= n
            self.items.append(c)

    def check_branches(self):
        labels = {it[:-1]: i for i, it in enumerate(self.items) if isinstance(it, str) and it.endswith(':')}
        for i, it in enumerate(self.items):
            if isinstance(it, Inst) and it.op.startswith(('s_cbranch', 's_branch')):
                tgt = labels[it.ops[0]]
                before, dist, k = [], 0, i
                while k >= 0 and dist < WIN:
                    p = self.items[k]
                    if isinstance(p, Inst):
                        if k != i and p.op in ('s_branch', 's_endpgm'):
                            break
                        before.append((p, dist - 1 + 1))
                        dist += p.states
                    k -= 1
                d2, k = 0, tgt
                while k < len(self.items) and d2 < WIN:
                    c = self.items[k]
                    if isinstance(c, Inst):
                        for p, d in before:
                            if p is it:
                                continue
                            have = d + d2
                            if need(p, c) > have:
                                raise RuntimeError(f'hazard across branch {it.text}: {p.text} -> {c.text} have {have}')
                        if c.op in ('s_branch', 's_endpgm'):
                            break
                        d2 += c.states
                    k += 1

    def text(self):
        out = []
        for it in self.items:
            if isinstance(it, Inst):
                out.append('  ' + it.text)
            else:
                out.append(it)
        return '\n'.join(out) + '\n'


def vr(b, n=1, k='v'):
    return f'{k}{b}' if n == 1 else f'{k}[{b}:{b + n - 1}]'


def ar(b, n=1):
    return vr(b, n, 'a')


def sr(b, n=1):
    return vr(b, n, 's')
```

```python
import sys
from gen_common import *
from gen_g1 import *

HEADER = open('interleave_layers__spectral_gfnet__glu_gated_geglu__prompt.s.ref').read().split('; Override')[0]


def assemble(gens, launches, path):
    a = Asm()
    descs, info = [], {}
    for g in gens:
        d, infos = g(a)
        descs.append(d)
        if isinstance(infos, tuple):
            infos = [infos]
        for (n, grid, blk, lds) in infos:
            info[n] = (grid, blk, lds)
    a.check_branches()
    s = HEADER
    for n in launches:
        grid, blk, lds = info[n]
        s += f'; @launch kernel={n.split("+")[0]} grid=({grid},1,1) block=({blk},1,1) lds={lds}\n'
    s += '.amdgcn_target "amdgcn-amd-amdhsa--gfx950"\n.text\n' + a.text()
    s += '.section .rodata,"a"\n' + ''.join(descs)
    open(path, 'w').write(s)
    print(path, 'bytes', len(s), 'auto nops', a.nops)


if __name__ == '__main__':
    assemble([gen_g1], ['g1_kernel'], 'g1.s')
```

```python
from asmlib import *

WS_Z, WS_X1, WS_LNX, WS_X2, WS_H = 0, 4 << 20, 8 << 20, 12 << 20, 16 << 20
H_BYTES = 128 * 112 * 1024
KA_X, KA_WR, KA_WI, KA_WG, KA_WU, KA_WD, KA_OUT, KA_DBG, KA_WS = 0, 8, 16, 32, 40, 48, 56, 64, 72


def kernel_start(a, name):
    a.raw('.p2align 8')
    a.raw(f'.globl {name}')
    a.raw(f'.type {name},@function')
    a.label(name)


def descriptor(name, vgpr, sgpr, accum):
    return f'''.p2align 6
.amdhsa_kernel {name}
  .amdhsa_next_free_vgpr {vgpr}
  .amdhsa_next_free_sgpr {sgpr}
  .amdhsa_accum_offset {accum}
  .amdhsa_group_segment_fixed_size 0
  .amdhsa_kernarg_size 80
  .amdhsa_user_sgpr_count 2
  .amdhsa_user_sgpr_kernarg_segment_ptr 1
  .amdhsa_system_sgpr_workgroup_id_x 1
  .amdhsa_float_denorm_mode_32 3
.end_amdhsa_kernel
'''


def srd(a, d, lo, hi, off, nbytes):
    if off == 0:
        a(f's_mov_b32 s{d}, s{lo}')
        a(f's_mov_b32 s{d+1}, s{hi}')
    else:
        o = off if isinstance(off, str) else hex(off)
        a(f's_add_u32 s{d}, s{lo}, {o}')
        a(f's_addc_u32 s{d+1}, s{hi}, 0')
    a(f's_mov_b32 s{d+2}, {hex(nbytes)}')
    a(f's_mov_b32 s{d+3}, 0x20000')


def f32hex(x):
    import struct
    return hex(struct.unpack('<I', struct.pack('<f', x))[0])


def stamp_out(a, sW, ws):
    a(f'''
    s_waitcnt vmcnt(0)
    s_memtime s[58:59]
    s_memrealtime s[60:61]
    s_waitcnt lgkmcnt(0)
    s_lshl_b32 s62, s2, 3
    s_add_u32 s62, s62, s{sW}
    s_lshl_b32 s62, s62, 6
    s_add_u32 s62, s62, {40 << 20}
    ''')
    srd(a, 64, ws, ws + 1, 's62', 64)
    for i in range(12):
        a(f'v_mov_b32 v{i}, s{50 + i}')
    a('v_mov_b32 v12, 0')
    a('s_mov_b64 exec, 1')
    for i in range(3):
        a(f'buffer_store_dwordx4 v[{4*i}:{4*i+3}], v12, s[64:67], 0 offen offset:{16*i}')
```

```python
from gen_common import *
import math

G1_ST = 31776
G1_GOFF, G1_UOFF, G1_JUNK = 16384, 23568, 30752
G1_NST = 4
G1_LDS = G1_ST * G1_NST


def gen_g1(a, name='g1_kernel', dma_at=(1, 5, 9, 13), rd_start=0, rd_step=1, prio=False, no_dma=False, no_rd=False, stamp=False, no_bar=False, same_tile=False, w_al=False, dma_sel=(0,1,2,3), lin_w=False, no_mfma=False):
    for s in range(448):
        assert (s * 4682) >> 16 == s // 14
    SA, SG, SU, SH = 4, 8, 12, 16
    sW, sMT, sNT, sOA, sOW, sMA, sMG, sMU, sCNT = 20, 21, 22, 23, 24, 25, 26, 27, 28
    sT0, sT1, sT2 = 29, 30, 31
    ACC = 0
    XF = [112, 128]
    WF = [144, 172]
    vX, vG, vM = [200, 201], [202, 203], [204, 205]
    vDA, vDW = 206, 207
    vL, vT0, vT1, vT2, vT3 = 208, 209, 210, 211, 212
    acc = lambda mt, t: ACC + (mt * 7 + t) * 4

    lin_w_code = f'''s_mul_i32 s{sT0}, s{sNT}, {32*7168}
    s_lshl_b32 s{sT1}, s{sW}, 10
    s_add_u32 s{sT0}, s{sT0}, s{sT1}
    s_cmp_eq_u32 s{sW}, 7
    s_cselect_b32 s{sT0}, 0x40000000, s{sT0}
    v_lshlrev_b32 v{vDW}, 4, v{vL}
    v_add_u32 v{vDW}, s{sT0}, v{vDW}''' if lin_w else ''
    wstep = 7168 if lin_w else 32 * 7168
    kernel_start(a, name)
    a(f'''
    s_cmp_ge_u32 s2, 256
    s_cbranch_scc1 {name}_end
    {'s_memtime s[50:51]' if stamp else ''}
    {'s_memrealtime s[52:53]' if stamp else ''}
    s_load_dwordx4 s[32:35], s[0:1], {KA_WG}
    s_load_dwordx2 s[36:37], s[0:1], {KA_WS}
    v_lshrrev_b32 v{vT0}, 6, v0
    v_and_b32 v{vL}, 63, v0
    v_readfirstlane_b32 s{sW}, v{vT0}
    s_and_b32 s{sT0}, s2, 7
    s_lshr_b32 s{sT1}, s2, 3
    s_and_b32 s{sMT}, s{sT0}, 1
    s_lshl_b32 s{sMT}, s{sMT}, 2
    s_and_b32 s{sT2}, s{sT1}, 3
    s_add_u32 s{sMT}, s{sMT}, s{sT2}
    s_lshr_b32 s{sNT}, s{sT0}, 1
    s_lshl_b32 s{sNT}, s{sNT}, 3
    s_lshr_b32 s{sT2}, s{sT1}, 2
    s_add_u32 s{sNT}, s{sNT}, s{sT2}
    s_lshl_b32 s{sMA}, s{sW}, 11
    v_lshlrev_b32 v{vDA}, 4, v{vL}
    v_add_u32 v{vDA}, s{sMA}, v{vDA}
    s_lshl_b32 s{sT0}, s{sW}, 6
    v_add_u32 v{vT0}, s{sT0}, v{vL}
    v_mul_u32_u24 v{vT1}, 4682, v{vT0}
    v_lshrrev_b32 v{vT1}, 16, v{vT1}
    v_mul_u32_u24 v{vT2}, 14, v{vT1}
    v_sub_u32 v{vT2}, v{vT0}, v{vT2}
    v_mul_u32_u24 v{vT1}, 7168, v{vT1}
    v_lshl_add_u32 v{vDW}, v{vT2}, 4, v{vT1}
    s_mul_i32 s{sT0}, s{sNT}, {0 if same_tile else (256 if w_al else 224)}
    s_lshl_b32 s{sMG}, s{sW}, 10
    s_add_u32 s{sMU}, s{sMG}, {G1_UOFF}
    s_add_u32 s{sMG}, s{sMG}, {G1_GOFF}
    s_cmp_eq_u32 s{sW}, 7
    s_cselect_b32 s{sT0}, 0x40000000, s{sT0}
    s_cselect_b32 s{sMG}, {G1_JUNK}, s{sMG}
    s_cselect_b32 s{sMU}, {G1_JUNK}, s{sMU}
    v_add_u32 v{vDW}, s{sT0}, v{vDW}
    {lin_w_code}
    s_lshl_b32 s{sT0}, s{sMT}, 19
    {f's_mov_b32 s{sT0}, 0' if same_tile else ''}
    s_add_u32 s{sT0}, s{sT0}, {hex(WS_LNX)}
    s_waitcnt lgkmcnt(0)
    ''')
    srd(a, SA, 36, 37, f's{sT0}', 512 * 1024)
    srd(a, SG, 32, 33, 0, 1024 * 3584 * 2)
    srd(a, SU, 34, 35, 0, 1024 * 3584 * 2)
    srd(a, SH, 36, 37, WS_H, H_BYTES)
    a(f's_mov_b32 s{sOA}, 0')
    a(f's_mov_b32 s{sOW}, 0')

    def dma_ops(slot):
        b = slot * G1_ST
        return [
            [f's_add_u32 m0, s{sMA}, {b}', f'buffer_load_dwordx4 v{vDA}, s[{SA}:{SA+3}], s{sOA} offen lds'],
            [f'buffer_load_dwordx4 v{vDA}, s[{SA}:{SA+3}], s{sOA} offen offset:1024 lds', f's_add_u32 s{sOA}, s{sOA}, 16384'],
            [f's_add_u32 m0, s{sMG}, {b}', f'buffer_load_dwordx4 v{vDW}, s[{SG}:{SG+3}], s{sOW} offen lds'],
            [f's_add_u32 m0, s{sMU}, {b}', f'buffer_load_dwordx4 v{vDW}, s[{SU}:{SU+3}], s{sOW} offen lds',
             f's_add_u32 s{sOW}, s{sOW}, {wstep}'],
        ]

    for st in range(G1_NST):
        for grp in dma_ops(st):
            for ins in grp:
                a(ins)
    a(f'''
    v_and_b32 v{vT0}, 15, v{vL}
    v_lshrrev_b32 v{vT1}, 4, v{vL}
    v_lshrrev_b32 v{vT2}, 2, v{vT0}
    v_sub_u32 v{vT3}, 0, v{vT2}
    v_and_b32 v{vT3}, 3, v{vT3}
    v_xor_b32 v{vT3}, v{vT3}, v{vT1}
    v_lshlrev_b32 v{vT3}, 4, v{vT3}
    v_lshl_add_u32 v{vX[0]}, v{vT0}, 6, v{vT3}
    s_and_b32 s{sT0}, s{sW}, 3
    s_lshl_b32 s{sT0}, s{sT0}, 12
    v_add_u32 v{vX[0]}, s{sT0}, v{vX[0]}
    v_lshrrev_b32 v{vT3}, 1, v{vT1}
    v_lshl_add_u32 v{vT2}, v{vT3}, 4, v{vT2}
    v_and_b32 v{vT3}, 1, v{vT1}
    v_lshl_add_u32 v{vT2}, v{vT3}, 2, v{vT2}
    v_mul_u32_u24 v{vT2}, 224, v{vT2}
    s_lshr_b32 s{sT0}, s{sW}, 2
    s_mul_i32 s{sT0}, s{sT0}, 112
    v_add_u32 v{vT2}, s{sT0}, v{vT2}
    v_and_b32 v{vT3}, 3, v{vL}
    v_lshl_add_u32 v{vG[0]}, v{vT3}, 3, v{vT2}
    v_and_b32 v{vT3}, 1, v{vL}
    v_lshl_add_u32 v{vM[0]}, v{vT3}, 3, v{vT2}
    v_bfe_u32 v{vT3}, v{vL}, 1, 1
    v_mul_u32_u24 v{vT3}, {G1_UOFF - G1_GOFF}, v{vT3}
    v_add_u32 v{vM[0]}, v{vM[0]}, v{vT3}
    v_add_u32 v{vX[1]}, {2 * G1_ST}, v{vX[0]}
    v_add_u32 v{vG[1]}, {2 * G1_ST}, v{vG[0]}
    v_add_u32 v{vM[1]}, {2 * G1_ST}, v{vM[0]}
    ''')
    for i in range(112):
        a(f'v_mov_b32 v{ACC + i}, 0')

    def read_ops(slot, p):
        hi, b = slot >> 1, (slot & 1) * G1_ST
        ops = []
        xs = [f'ds_read_b128 {vr(XF[p] + 4 * mt, 4)}, v{vX[hi]} offset:{b + mt * 1024}' for mt in range(4)]
        ws = []
        for t in range(7):
            for jj in range(2):
                if t < 6:
                    off = b + (G1_UOFF if t & 1 else G1_GOFF) + (t >> 1) * 32 + jj * 8 * 224
                    ad = vG[hi]
                else:
                    off = b + G1_GOFF + 96 + jj * 8 * 224
                    ad = vM[hi]
                ws.append(f'ds_read_b64_tr_b16 {vr(WF[p] + 4 * t + 2 * jj, 2)}, v{ad} offset:{off}')
        return xs + ws

    a(f's_waitcnt vmcnt({4 * (G1_NST - 1)})')
    a('s_barrier')
    for ins in read_ops(0, 0):
        a(ins)
    if prio:
        a(f's_cmp_ge_u32 s{sW}, 4')
        a(f's_cbranch_scc0 {name}_noprio')
        a('s_setprio 1')
        a.label(f'{name}_noprio')
    if stamp:
        a('s_memtime s[54:55]')
    a(f's_mov_b32 s{sCNT}, {32 // G1_NST}')
    a.raw('.p2align 6')
    a.label(f'{name}_loop')
    for u in range(G1_NST):
        p = u & 1
        a(f's_waitcnt vmcnt({len(dma_sel) * (G1_NST - 2)}) lgkmcnt(0)')
        if not no_bar:
            a('s_barrier')
        rds = read_ops((u + 1) % G1_NST, p ^ 1)
        dms = dma_ops(u)
        if no_rd:
            rds = []
        if no_dma:
            dms = [[] for _ in dms]
        dms = [g if i in dma_sel else [x for x in g if x.startswith('s_')] for i, g in enumerate(dms)]
        i = 0
        for t in range(7):
            for mt in range(4):
                if not no_mfma:
                    a(f'v_mfma_f32_16x16x32_bf16 {vr(acc(mt, t), 4)}, {vr(WF[p] + 4 * t, 4)}, {vr(XF[p] + 4 * mt, 4)}, {vr(acc(mt, t), 4)}')
                if i in dma_at:
                    for ins in dms.pop(0):
                        a(ins)
                if i >= rd_start and (i - rd_start) % rd_step == 0 and rds:
                    a(rds.pop(0))
                i += 1
        assert not rds and not dms
    a(f's_sub_u32 s{sCNT}, s{sCNT}, 1')
    a(f's_cmp_lg_u32 s{sCNT}, 0')
    a(f's_cbranch_scc1 {name}_loop')

    if stamp:
        a('s_memtime s[56:57]')
    c1 = -2.0 * math.log2(math.e) * math.sqrt(2.0 / math.pi)
    c2 = c1 * 0.044715
    vC1, vONE, vTMP, vO = 112, 114, 116, 140
    vS1, vS2, vS3 = 200, 201, 202
    a(f'''
    s_mov_b32 s38, {f32hex(c2)}
    s_mov_b32 s39, {f32hex(c2)}
    v_mov_b32 v{vC1}, {f32hex(c1)}
    v_mov_b32 v{vC1+1}, {f32hex(c1)}
    v_mov_b32 v{vONE}, 1.0
    v_mov_b32 v{vONE+1}, 1.0
    s_and_b32 s{sT0}, s{sW}, 3
    s_lshl_b32 s{sT0}, s{sT0}, 2
    s_lshl_b32 s{sT1}, s{sMT}, 4
    s_add_u32 s{sT0}, s{sT0}, s{sT1}
    s_mul_i32 s{sT0}, s{sT0}, {112 * 1024}
    s_lshr_b32 s{sT1}, s{sW}, 2            ; nh
    s_lshl_b32 s40, s{sNT}, 1
    s_add_u32 s40, s40, s{sT1}
    s_and_b32 s40, s40, 15                 ; u & 15
    s_lshr_b32 s43, s{sNT}, 3
    s_mul_i32 s43, s43, 28
    s_add_u32 s40, s40, s43
    s_lshl_b32 s40, s40, 10
    s_add_u32 s40, s40, s{sT0}
    s_and_b32 s41, s{sNT}, 7
    s_add_u32 s41, s41, s43
    s_add_u32 s41, s41, 16
    s_lshl_b32 s41, s41, 10
    s_add_u32 s41, s41, s{sT0}             ; type-2
    s_lshr_b32 s42, s{sNT}, 1
    s_and_b32 s42, s42, 3
    s_add_u32 s42, s42, s43
    s_add_u32 s42, s42, 24
    s_lshl_b32 s42, s42, 10
    s_add_u32 s42, s42, s{sT0}             ; type-3
    v_lshlrev_b32 v{vS1}, 4, v{vL}
    s_lshl_b32 s{sT2}, s{sT1}, 3
    v_add_u32 v{vS2}, s{sT2}, v{vS1}
    s_and_b32 s{sT2}, s{sNT}, 1
    s_lshl_b32 s{sT2}, s{sT2}, 1
    s_add_u32 s{sT2}, s{sT2}, s{sT1}
    s_lshl_b32 s{sT2}, s{sT2}, 8
    v_and_b32 v{vS3}, 15, v{vL}
    v_lshlrev_b32 v{vS3}, 4, v{vS3}
    v_add_u32 v{vS3}, s{sT2}, v{vS3}
    v_bfe_u32 v{vT0}, v{vL}, 4, 1
    v_lshl_add_u32 v{vS3}, v{vT0}, 3, v{vS3}
    v_lshrrev_b32 v{vT0}, 5, v{vL}
    v_mul_u32_u24 v{vT0}, {112 * 1024}, v{vT0}
    v_add_u32 v{vS3}, v{vS3}, v{vT0}
    ''')

    def gelu4(g, u, out):
        T, P = vTMP, vTMP + 4
        for h in (0, 2):
            a(f'v_pk_mul_f32 {vr(T+h,2)}, {vr(g+h,2)}, {vr(g+h,2)}')
        for h in (0, 2):
            a(f'v_pk_fma_f32 {vr(T+h,2)}, {vr(T+h,2)}, s[38:39], {vr(vC1,2)}')
        for h in (0, 2):
            a(f'v_pk_mul_f32 {vr(T+h,2)}, {vr(T+h,2)}, {vr(g+h,2)}')
        for h in range(4):
            a(f'v_exp_f32 v{T+h}, v{T+h}')
        for h in (0, 2):
            a(f'v_pk_mul_f32 {vr(P+h,2)}, {vr(g+h,2)}, {vr(u+h,2)}')
        for h in (0, 2):
            a(f'v_pk_add_f32 {vr(T+h,2)}, {vr(T+h,2)}, {vr(vONE,2)}')
        for h in range(4):
            a(f'v_rcp_f32 v{T+h}, v{T+h}')
        for h in (0, 2):
            a(f'v_pk_mul_f32 {vr(P+h,2)}, {vr(P+h,2)}, {vr(T+h,2)}')
        a(f'v_cvt_pk_bf16_f32 v{out}, v{P}, v{P+1}')
        a(f'v_cvt_pk_bf16_f32 v{out+1}, v{P+2}, v{P+3}')

    for mt in range(4):
        o = vO + 8 * mt
        gelu4(acc(mt, 0), acc(mt, 1), o)
        gelu4(acc(mt, 2), acc(mt, 3), o + 2)
        a(f'buffer_store_dwordx4 {vr(o,4)}, v{vS1}, s[{SH}:{SH+3}], s40 offen')
        gelu4(acc(mt, 4), acc(mt, 5), o + 4)
        a(f'buffer_store_dwordx2 {vr(o+4,2)}, v{vS2}, s[{SH}:{SH+3}], s41 offen')
        if mt & 1:
            for r in range(4):
                a(f'v_permlane32_swap_b32 v{acc(mt-1,6)+r}, v{acc(mt,6)+r}')
            gelu4(acc(mt - 1, 6), acc(mt, 6), o + 6)
            a(f'buffer_store_dwordx2 {vr(o+6,2)}, v{vS3}, s[{SH}:{SH+3}], s42 offen')
            a(f's_add_u32 s42, s42, {2 * 112 * 1024}')
        if mt < 3:
            a(f's_add_u32 s40, s40, {112 * 1024}')
            a(f's_add_u32 s41, s41, {112 * 1024}')
    if stamp:
        stamp_out(a, sW, 36)
    a.label(f'{name}_end')
    a('s_endpgm')
    return descriptor(name, 216, 72, 216), (name, 256, 512, G1_LDS)
```

```python
from gen_common import *

G2_LDS = 3 * 4 * 8192
MT_STRIDE = 112 * 1024


def gen_g2(a, names=('g2a_kernel', 'g2b_kernel'), stamp=False, no_ld=False, same=False, only=None, xmap=0, no_mfma=False):
    SH, SD, SR, SO = 4, 8, 12, 16
    sW, sT, sN, sA, sLo, sHi, sHiD, sStep, sIt = 20, 21, 22, 23, 24, 25, 26, 27, 28
    sT0, sT1, sT2, sSelL, sSelH, sLo2, sLo3 = 29, 30, 31, 40, 41, 42, 43
    RAW = lambda slot, j: slot * 32 + j * 4
    PRM = lambda p, t: 128 + p * 32 + t * 4
    vA = [192, 193, 194, 195]
    vB0, vB1, vB3, vL, vT0, vT1, vT2, vRes = 196, 197, 198, 199, 200, 201, 202, 204
    vO = 203
    acc = lambda q, j: (q * 8 + j) * 4
    AF = lambda slot, q: 128 + slot * 16 + q * 4
    base = names[0][:-8]
    for li, name in enumerate(names):
        kernel_start(a, name)
        if stamp:
            a('s_memtime s[50:51]\ns_memrealtime s[52:53]')
        a(f's_load_dwordx2 s[36:37], s[0:1], {KA_WS}')
        a(f's_load_dwordx4 s[32:35], s[0:1], {KA_WD}')
        if li == 0:
            a('s_waitcnt lgkmcnt(0)')
            a(f's_add_u32 s34, s36, {hex(WS_X2)}')
            a(f's_addc_u32 s35, s37, 0')
            a(f's_branch {base}_body')
    a.label(f'{base}_body')
    xm = ''
    if same:
        xm = f's_mov_b32 s{sT}, 0\ns_mov_b32 s{sN}, 0'
    if xmap == 1:
        xm = f's_lshl_b32 s{sT}, s{sT0}, 2\ns_and_b32 s{sT2}, s{sT1}, 3\ns_add_u32 s{sT}, s{sT}, s{sT2}\ns_lshr_b32 s{sN}, s{sT1}, 2'
    if xmap == 2:
        xm = f's_and_b32 s{sT}, s{sT0}, 1\ns_lshl_b32 s{sT}, s{sT}, 4\ns_and_b32 s{sT2}, s{sT1}, 15\ns_add_u32 s{sT}, s{sT}, s{sT2}\ns_lshr_b32 s{sN}, s{sT0}, 1\ns_lshl_b32 s{sN}, s{sN}, 1\ns_lshr_b32 s{sT2}, s{sT1}, 4\ns_add_u32 s{sN}, s{sN}, s{sT2}'
    a(f'''
    s_cmp_ge_u32 s2, 256
    s_cbranch_scc1 {base}_end
    v_lshrrev_b32 v{vT0}, 6, v0
    v_and_b32 v{vL}, 63, v0
    v_readfirstlane_b32 s{sW}, v{vT0}
    s_and_b32 s{sT0}, s2, 7
    s_lshr_b32 s{sT1}, s2, 3
    s_lshr_b32 s{sT}, s{sT0}, 1
    s_lshl_b32 s{sT}, s{sT}, 3
    s_and_b32 s{sT2}, s{sT1}, 7
    s_add_u32 s{sT}, s{sT}, s{sT2}
    s_and_b32 s{sN}, s{sT0}, 1
    s_lshl_b32 s{sN}, s{sN}, 2
    s_lshr_b32 s{sT2}, s{sT1}, 3
    s_add_u32 s{sN}, s{sN}, s{sT2}
    {xm}
    ; B voffsets
    v_and_b32 v{vT0}, 15, v{vL}
    v_lshrrev_b32 v{vT1}, 4, v{vL}
    v_lshlrev_b32 v{vT0}, 4, v{vT0}
    s_lshl_b32 s{sT0}, s{sN}, 8
    v_add_u32 v{vT0}, s{sT0}, v{vT0}
    v_lshl_add_u32 v{vB0}, v{vT1}, 13, v{vT0}
    v_add_u32 v{vB1}, 4096, v{vB0}
    v_mul_u32_u24 v{vB3}, {56 * 2048}, v{vT1}
    v_add_u32 v{vB3}, v{vB3}, v{vT0}
    s_mul_i32 s{sLo}, s{sW}, {16 * 56 * 2048}
    s_add_u32 s{sLo2}, s{sLo}, {32 * 2048}
    s_add_u32 s{sLo3}, s{sLo}, {48 * 2048}
    s_mov_b32 s{sHiD}, {16 * 2048}
    s_mov_b32 s{sStep}, {56 * 2048}
    s_mul_i32 s{sA}, s{sW}, {28 * 1024}
    v_lshlrev_b32 v{vT2}, 4, v{vL}
    ''')
    for q in range(4):
        a(f's_add_u32 s{sT0}, s{sW}, {q}')
        a(f's_and_b32 s{sT0}, s{sT0}, 3')
        a(f's_mul_i32 s{sT0}, s{sT0}, {MT_STRIDE}')
        a(f'v_add_u32 v{vA[q]}, s{sT0}, v{vT2}')
    a(f's_mul_i32 s{sT0}, s{sT}, {4 * MT_STRIDE}')
    a(f's_add_u32 s{sT0}, s{sT0}, {hex(WS_H)}')
    a('s_waitcnt lgkmcnt(0)')
    srd(a, SH, 36, 37, f's{sT0}', 4 * MT_STRIDE)
    srd(a, SD, 32, 33, 0, 3584 * 1024 * 2)

    def b_loads(slot):
        ops = []
        for j in range(8):
            vb = (vB0, vB1)[(j >> 1) & 1]
            so = sLo if j < 4 else sHi
            off = ' offset:2048' if j & 1 else ''
            grp = []
            if j == 0:
                grp.append(f's_add_u32 s{sHi}, s{sLo}, s{sHiD}')
            grp.append(f'buffer_load_dwordx4 {vr(RAW(slot, j), 4)}, v{vb}, s[{SD}:{SD+3}], s{so} offen{off}')
            if j == 7:
                grp.append(f's_add_u32 s{sLo}, s{sLo}, s{sStep}')
            ops.append(grp)
        return ops

    def a_load(slot, q):
        grp = [f'buffer_load_dwordx4 {ar(AF(slot, q), 4)}, v{vA[q]}, s[{SH}:{SH+3}], s{sA} offen']
        if q == 3:
            grp.append(f's_add_u32 s{sA}, s{sA}, 1024')
        return grp

    def perms(slot, p):
        ops = []
        for c in range(4):
            for pp in range(4):
                ops.append(f'v_perm_b32 v{PRM(p, 2*c) + pp}, v{RAW(slot, 2*pp+1) + c}, v{RAW(slot, 2*pp) + c}, s{sSelL}')
                ops.append(f'v_perm_b32 v{PRM(p, 2*c+1) + pp}, v{RAW(slot, 2*pp+1) + c}, v{RAW(slot, 2*pp) + c}, s{sSelH}')
        return ops

    for st in range(4):
        for g in b_loads(st):
            for ins in g:
                a(ins)
        for q in range(4):
            for ins in a_load(st, q):
                a(ins)
    srd(a, SR, 36, 37, WS_X1, 4 << 20)
    srd(a, SO, 34, 35, 0, 4 << 20)
    a(f's_mov_b32 s{sSelL}, 0x05040100')
    a(f's_mov_b32 s{sSelH}, 0x07060302')
    for i in range(128):
        a(f'v_accvgpr_write_b32 a{i}, 0')
    a(f'''
    s_lshr_b32 s{sT0}, s{sT}, 2
    s_lshl_b32 s{sT0}, s{sT0}, 8
    s_and_b32 s{sT1}, s{sW}, 1
    s_lshl_b32 s{sT1}, s{sT1}, 7
    s_add_u32 s{sT0}, s{sT0}, s{sT1}
    s_lshl_b32 s{sT1}, s{sT}, 1
    s_lshr_b32 s{sT2}, s{sW}, 1
    s_add_u32 s{sT1}, s{sT1}, s{sT2}
    s_and_b32 s{sT1}, s{sT1}, 7
    s_add_u32 s{sT0}, s{sT0}, s{sT1}
    s_lshl_b32 s{sT0}, s{sT0}, 11
    v_lshl_add_u32 v{vO}, v{vT1}, 16, v{vT0}
    v_add_u32 v{vO}, s{sT0}, v{vO}
    s_waitcnt vmcnt(40)
    ''')
    for ins in perms(0, 0):
        a(ins)
    if stamp:
        a('s_memtime s[54:55]')
    a(f's_mov_b32 s{sIt}, 0')

    def step(u, loads, wait, do_perm, extra=()):
        p = u & 1
        a(f's_waitcnt vmcnt({wait})')
        pm = perms((u + 1) & 3, p ^ 1) if do_perm else []
        bl = b_loads(u) if loads else []
        extra = list(extra)
        i = 0
        for q in range(4):
            for j in range(8):
                if not no_mfma:
                    a(f'v_mfma_f32_16x16x32_bf16 {ar(acc(q, j), 4)}, {ar(AF(u, q), 4)}, {vr(PRM(p, j), 4)}, {ar(acc(q, j), 4)}')
                if pm:
                    x = pm.pop(0)
                    if not no_mfma:
                        a(x)
                if bl and j in (1, 4):
                    for ins in bl.pop(0):
                        if only != 'A' or ins.startswith('s_'):
                            a(ins)
                if loads and j == 7:
                    for ins in a_load(u, q):
                        if only != 'B' or ins.startswith('s_'):
                            a(ins)
                if extra and j in (2, 6):
                    a(extra.pop(0))
                i += 1
        assert not pm and not bl and not extra

    a.raw('.p2align 6')
    a.label(f'{base}_loop')
    a(f'''
    s_cmp_eq_u32 s{sIt}, 3
    s_cselect_b32 s{sLo}, s{sLo2}, s{sLo}
    s_cselect_b32 s{sHiD}, {56 * 2048}, s{sHiD}
    s_cselect_b32 s{sStep}, {112 * 2048}, s{sStep}
    s_cmp_eq_u32 s{sIt}, 5
    s_cbranch_scc0 {base}_no3
    s_mov_b32 s{sLo}, s{sLo3}
    s_mov_b32 s{sHiD}, {4 * 2048}
    s_mov_b32 s{sStep}, {224 * 2048}
    v_mov_b32 v{vB0}, v{vB3}
    v_add_u32 v{vB1}, 4096, v{vB3}
    ''')
    a.label(f'{base}_no3')
    for u in range(4):
        step(u, not no_ld, {None: 24, 'A': 8, 'B': 16}[only], True)
    a(f's_add_u32 s{sIt}, s{sIt}, 1')
    a(f's_cmp_lg_u32 s{sIt}, 6')
    a(f's_cbranch_scc1 {base}_loop')
    step(0, False, 24, True)
    step(1, False, 12, True)
    step(2, False, 0, True)
    res = []
    for r in range(4):
        res.append(f's_mov_b32 s{sT0}, {r * 16384}')
        res.append(f'buffer_load_dwordx4 {vr(vRes + 4*r, 4)}, v{vO}, s[{SR}:{SR+3}], s{sT0} offen')
    step(3, False, 0, False, extra=res)
    if stamp:
        a('s_memtime s[56:57]')
    a(f'''
    v_lshlrev_b32 v{vT2}, 4, v{vL}
    ''')
    for q in range(1, 4):
        a(f's_add_u32 s{sT0}, s{sW}, {q}')
        a(f's_and_b32 s{sT0}, s{sT0}, 3')
        a(f's_mul_i32 s{sT0}, s{sT0}, {3 * 8192}')
        a(f'v_add_u32 v{vT0}, s{sT0}, v{vT2}')
        for j in range(8):
            a(f'ds_write_b128 v{vT0}, {ar(acc(q, j), 4)} offset:{(q - 1) * 8192 + j * 1024}')
    a(f's_mul_i32 s{sT0}, s{sW}, {3 * 8192}')
    a(f'v_add_u32 v{vT0}, s{sT0}, v{vT2}')
    for i in range(32):
        a(f'v_accvgpr_read_b32 v{96 + i}, a{i}')
    a('s_waitcnt lgkmcnt(0)')
    a('s_barrier')
    for j in range(8):
        for q in range(3):
            a(f'ds_read_b128 {vr(q * 32 + j * 4, 4)}, v{vT0} offset:{q * 8192 + j * 1024}')
    for j in range(8):
        a(f's_waitcnt lgkmcnt({min(15, 21 - 3 * j)})')
        for h in (0, 2):
            a(f'v_pk_add_f32 {vr(96 + j*4 + h, 2)}, {vr(96 + j*4 + h, 2)}, {vr(j*4 + h, 2)}')
            a(f'v_pk_add_f32 {vr(32 + j*4 + h, 2)}, {vr(32 + j*4 + h, 2)}, {vr(64 + j*4 + h, 2)}')
        for h in (0, 2):
            a(f'v_pk_add_f32 {vr(96 + j*4 + h, 2)}, {vr(96 + j*4 + h, 2)}, {vr(32 + j*4 + h, 2)}')
    a('s_waitcnt vmcnt(0)')
    for r in range(4):
        for c in range(4):
            a(f'v_lshlrev_b32 v{128 + 2*c}, 16, v{vRes + 4*r + c}')
            a(f'v_and_b32 v{129 + 2*c}, 0xffff0000, v{vRes + 4*r + c}')
        for j in range(8):
            a(f'v_add_f32 v{128 + j}, v{128 + j}, v{96 + j*4 + r}')
        for c in range(4):
            a(f'v_cvt_pk_bf16_f32 v{140 + 4*r + c}, v{128 + 2*c}, v{129 + 2*c}')
        a(f's_mov_b32 s{sT0}, {r * 16384}')
        a(f'buffer_store_dwordx4 {vr(140 + 4*r, 4)}, v{vO}, s[{SO}:{SO+3}], s{sT0} offen')
    if stamp:
        stamp_out(a, sW, 36)
    a.label(f'{base}_end')
    a('s_endpgm')
    return (''.join(descriptor(n, 224 + 192, 72, 224) for n in names), [(n, 256, 256, G2_LDS) for n in names])
```

```python
from gen_common import *

EPS = 1e-5


def sincos(a, dc, ds, fv, k, base, tmp):
    if base is None:
        a(f'v_mul_f32 v{tmp}, {f32hex(k)}, v{fv}')
    elif k == 0:
        tmp = base
    else:
        a(f'v_fmamk_f32 v{tmp}, v{fv}, {f32hex(k)}, v{base}')
    a(f'v_cos_f32 v{dc}, v{tmp}')
    a(f'v_sin_f32 v{ds}, v{tmp}')


def wave_reduce(a, regs, sdst):
    for m in ('row_shr:1', 'row_shr:2', 'row_shr:4', 'row_shr:8'):
        for r in regs:
            a(f'v_add_f32_dpp v{r}, v{r}, v{r} {m} row_mask:0xf bank_mask:0xf')
    for r in regs:
        a(f'v_add_f32_dpp v{r}, v{r}, v{r} row_bcast:15 row_mask:0xa bank_mask:0xf')
    for r in regs:
        a(f'v_add_f32_dpp v{r}, v{r}, v{r} row_bcast:31 row_mask:0xc bank_mask:0xf')
    for r, s in zip(regs, sdst):
        a(f'v_readlane_b32 s{s}, v{r}, 63')


def entries(a, names, stamp):
    base = names[0][:-8]
    for li, name in enumerate(names):
        kernel_start(a, name)
        if stamp:
            a('s_memtime s[50:51]\ns_memrealtime s[52:53]')
        a(f's_load_dwordx2 s[36:37], s[0:1], {KA_WS}')
        if li == 0:
            a(f's_load_dwordx2 s[32:33], s[0:1], {KA_X}')
            a('s_waitcnt lgkmcnt(0)')
            a(f's_branch {base}_body')
        else:
            a('s_waitcnt lgkmcnt(0)')
            a(f's_add_u32 s32, s36, {hex(WS_X2)}')
            a(f's_addc_u32 s33, s37, 0')
    a.label(f'{base}_body')
    return base


def z_voffset(a, dst, vL, sW, t0, t1, sT0, sT1):
    a(f'''
    v_bfe_u32 v{t0}, v{vL}, 2, 2
    v_lshrrev_b32 v{t1}, 4, v{vL}
    v_lshlrev_b32 v{t0}, 17, v{t0}
    v_lshl_add_u32 v{t0}, v{t1}, 15, v{t0}
    v_and_b32 v{t1}, 3, v{vL}
    v_lshl_add_u32 v{dst}, v{t1}, 4, v{t0}
    s_and_b32 s{sT0}, s2, 7
    s_lshl_b32 s{sT0}, s{sT0}, 5
    s_lshr_b32 s{sT1}, s2, 3
    s_add_u32 s{sT0}, s{sT0}, s{sT1}
    s_lshl_b32 s{sT0}, s{sT0}, 6
    s_lshl_b32 s{sT1}, s{sW}, 20
    s_add_u32 s{sT0}, s{sT0}, s{sT1}
    v_add_u32 v{dst}, s{sT0}, v{dst}
    ''')


def radix8_const(a, dst, vL, t, sign):
    t0, t1, t2, t3, t4 = t, t + 1, t + 2, t + 3, t + 4
    a(f'''
    v_bfe_u32 v{t0}, v{vL}, 1, 3
    v_lshrrev_b32 v{t1}, 4, v{vL}
    v_lshlrev_b32 v{t1}, 1, v{t1}
    v_and_b32 v{t2}, 1, v{vL}
    v_cvt_f32_u32 v{t2}, v{t2}
    v_mul_f32 v{t2}, 0.25, v{t2}
    ''')
    for e in range(2):
        if sign < 0:
            a(f'v_add_u32 v{t3}, {e}, v{t1}')
            a(f'v_lshl_add_u32 v{t3}, v{t3}, 8, s2')
            a(f'v_mul_u32_u24 v{t3}, v{t3}, v{t0}')
        else:
            a(f'v_add_u32 v{t4}, {e}, v{t1}')
            a(f'v_lshl_add_u32 v{t3}, v{t0}, 8, s2')
            a(f'v_mul_u32_u24 v{t3}, v{t3}, v{t4}')
        a(f'v_and_b32 v{t3}, 2047, v{t3}')
        a(f'v_cvt_f32_u32 v{t3}, v{t3}')
        a(f'v_fmamk_f32 v{t3}, v{t3}, {f32hex(-sign / 2048.0)}, v{t2}')
        a(f'v_cos_f32 v{t4}, v{t3}')
        a(f'v_sin_f32 v{t3}, v{t3}')
        a(f'v_cvt_pk_bf16_f32 v{dst + e}, v{t4}, v{t3}')


def ln_stats(a, X, ST, s_out):
    a(f'v_pk_add_f32 {vr(ST,2)}, {vr(X,2)}, {vr(X+2,2)}')
    a(f'v_pk_mul_f32 {vr(ST+2,2)}, {vr(X,2)}, {vr(X,2)}')
    for i in range(1, 8):
        if i > 1:
            a(f'v_pk_add_f32 {vr(ST,2)}, {vr(ST,2)}, {vr(X+2*i,2)}')
        a(f'v_pk_fma_f32 {vr(ST+2,2)}, {vr(X+2*i,2)}, {vr(X+2*i,2)}, {vr(ST+2,2)}')
    a(f'v_add_f32 v{ST+2}, v{ST+2}, v{ST+3}')


def ln_finish(a, s_se, s_so, s_sq, R):
    a(f'''
    v_mov_b32 v{R+2}, s{s_se}
    v_add_f32 v{R+2}, s{s_so}, v{R+2}
    v_mul_f32 v{R+2}, {f32hex(-1.0/1024)}, v{R+2}
    v_mov_b32 v{R+1}, {f32hex(EPS)}
    v_mov_b32 v{R}, s{s_sq}
    v_fmamk_f32 v{R}, v{R}, {f32hex(1.0/1024)}, v{R+1}
    v_fma_f32 v{R}, -v{R+2}, v{R+2}, v{R}
    v_max_f32 v{R}, v{R}, v{R+1}
    v_rsq_f32 v{R}, v{R}
    v_mul_f32 v{R+2}, v{R+2}, v{R}
    ''')


P1_E = 16384
P1_ES = 4096 + 128
P1_LDS = P1_E + 4 * P1_ES


def gen_p1(a, names=('p1a_kernel', 'p1b_kernel'), stamp=False):
    SX, SZ = 4, 8
    sW, sT0, sT1 = 20, 21, 22
    vL, vT = 0, 1
    RAW = 8
    C1, NS1, TWC, TWS, C2, R8 = 24, 32, 40, 56, 72, 88
    XF = 90
    ST = 122
    AOP = 8
    vZ, vLW, vLR, vEW, vER = 130, 131, 132, 133, 134
    D2 = 136
    PK = 168
    base = entries(a, names, stamp)
    a(f'''
    s_cmp_ge_u32 s2, 256
    s_cbranch_scc1 {base}_end
    v_lshrrev_b32 v1, 6, v0
    v_and_b32 v{vL}, 63, v0
    v_readfirstlane_b32 s{sW}, v1
    v_lshlrev_b32 v2, 4, v{vL}
    ''')
    srd(a, SX, 32, 33, 0, 4 << 20)
    a(f'''
    s_lshl_b32 s{sT0}, s{sW}, 9
    s_add_u32 s{sT0}, s{sT0}, s2
    s_lshl_b32 s{sT0}, s{sT0}, 11
    s_add_u32 s{sT1}, s{sT0}, {256 * 2048}
    buffer_load_dwordx4 {vr(RAW,4)}, v2, s[{SX}:{SX+3}], s{sT0} offen
    buffer_load_dwordx4 {vr(RAW+4,4)}, v2, s[{SX}:{SX+3}], s{sT0} offen offset:1024
    buffer_load_dwordx4 {vr(RAW+8,4)}, v2, s[{SX}:{SX+3}], s{sT1} offen
    buffer_load_dwordx4 {vr(RAW+12,4)}, v2, s[{SX}:{SX+3}], s{sT1} offen offset:1024
    ''')
    srd(a, SZ, 36, 37, WS_Z, 4 << 20)
    a(f'''
    s_lshl_b32 s{sT0}, s{sW}, 12
    v_add_u32 v{vLW}, s{sT0}, v2
    v_lshrrev_b32 v3, 5, v{vL}
    v_bfe_u32 v4, v{vL}, 2, 2
    v_lshl_add_u32 v3, v3, 3, v4
    v_lshlrev_b32 v3, 6, v3
    v_bfe_u32 v4, v{vL}, 4, 1
    v_lshl_add_u32 v3, v4, 5, v3
    v_and_b32 v4, 3, v{vL}
    v_lshl_add_u32 v3, v4, 3, v3
    v_add_u32 v{vLR}, s{sT0}, v3
    s_mul_i32 s{sT0}, s{sW}, {P1_ES}
    s_add_u32 s{sT0}, s{sT0}, {P1_E}
    v_and_b32 v3, 31, v{vL}
    v_lshrrev_b32 v4, 5, v{vL}
    v_lshl_add_u32 v3, v4, 6, v3
    v_lshlrev_b32 v3, 3, v3
    v_add_u32 v{vEW}, s{sT0}, v3
    v_lshrrev_b32 v3, 4, v{vL}
    v_mul_u32_u24 v3, {P1_ES}, v3
    v_and_b32 v4, 15, v{vL}
    v_lshl_add_u32 v3, v4, 5, v3
    s_lshl_b32 s{sT0}, s{sW}, 10
    s_add_u32 s{sT0}, s{sT0}, {P1_E}
    v_add_u32 v{vER}, s{sT0}, v3
    ''')
    z_voffset(a, vZ, vL, sW, 3, 4, sT0, sT1)
    a(f'''
    v_and_b32 v1, 31, v{vL}
    v_cvt_f32_u32 v1, v1
    v_lshrrev_b32 v2, 5, v{vL}
    v_cvt_f32_u32 v2, v2
    v_mul_f32 v3, v1, v2
    v_mul_f32 v4, 0.25, v3
    ''')
    for q in range(2):
        for u in range(4):
            for e in range(2):
                sincos(a, XF + e, XF + 2 + e, 1, (16 * q + 2 * u + e) / 32.0, 4, 5)
            a(f'v_cvt_pk_bf16_f32 v{C1 + 4*q + u}, v{XF}, v{XF+1}')
            a(f'v_cvt_pk_bf16_f32 v{NS1 + 4*q + u}, -v{XF+2}, -v{XF+3}')
    a(f'v_mul_f32 v4, {f32hex(4/1024.0)}, v3')
    for r in range(16):
        sincos(a, TWC + r, TWS + r, 1, ((r & 3) + 8 * (r >> 2)) / 1024.0, 4, 5)
    a(f'''
    v_bfe_u32 v1, v{vL}, 1, 4
    v_cvt_f32_u32 v1, v1
    v_mul_f32 v3, v1, v2
    v_and_b32 v4, 1, v{vL}
    v_cvt_f32_u32 v4, v4
    v_mul_f32 v4, 0.25, v4
    v_fmamk_f32 v4, v3, {f32hex(4/32.0)}, v4
    ''')
    for q in range(4):
        for u in range(4):
            sincos(a, XF, XF + 1, 1, (u + 8 * q) / 32.0, 4, 5)
            a(f'v_cvt_pk_bf16_f32 v{C2 + 4*q + u}, v{XF}, v{XF+1}')
    radix8_const(a, R8, vL, 1, -1)
    if stamp:
        a('s_memtime s[54:55]')
    for e in range(2):
        a(f's_waitcnt vmcnt({2 - 2*e})')
        for c in range(8):
            a(f'v_lshlrev_b32 v{XF + 16*e + 2*c}, 16, v{RAW + 8*e + c}')
            a(f'v_and_b32 v{XF + 16*e + 2*c + 1}, 0xffff0000, v{RAW + 8*e + c}')
        ln_stats(a, XF + 16 * e, ST + 4 * e, None)
    wave_reduce(a, [ST, ST + 1, ST + 2, ST + 4, ST + 5, ST + 6], [24, 25, 26, 27, 28, 29])
    for e in range(2):
        ln_finish(a, 24 + 3 * e, 25 + 3 * e, 26 + 3 * e, ST + 4 * e)
    for e in range(2):
        R = ST + 4 * e
        for c in range(8):
            a(f'v_pk_fma_f32 {vr(XF + 16*e + 2*c, 2)}, {vr(XF + 16*e + 2*c, 2)}, {vr(R,2)}, {vr(R+2,2)} op_sel_hi:[1,0,0]')
        for c in range(8):
            a(f'v_cvt_pk_bf16_f32 v{RAW + 8*e + c}, v{XF + 16*e + 2*c}, v{XF + 16*e + 2*c + 1}')
        a(f'ds_write_b128 v{vLW}, {vr(RAW + 8*e, 4)} offset:{2048*e}')
        a(f'ds_write_b128 v{vLW}, {vr(RAW + 8*e + 4, 4)} offset:{2048*e + 1024}')
        a(f'v_mov_b32 v{R+1}, s{24 + 3*e}')
        a(f'v_subrev_f32 v{R+1}, s{25 + 3*e}, v{R+1}')
        a(f'v_mul_f32 v{R+1}, v{R+1}, v{R}')
    a('s_waitcnt lgkmcnt(0)')
    for e in range(2):
        for q in range(2):
            for jj in range(2):
                a(f'ds_read_b64_tr_b16 {vr(AOP + 8*e + 4*q + 2*jj, 2)}, v{vLR} offset:{2048*e + (16*q + 4*jj) * 64}')
    for e in range(2):
        a(f's_waitcnt lgkmcnt({4 - 4*e})')
        DR, DI = XF, XF + 16
        if e == 1:
            DR, DI = 184, 200
        for q in range(2):
            c = '0' if q == 0 else vr(DR, 16)
            a(f'v_mfma_f32_32x32x16_bf16 {vr(DR,16)}, {vr(AOP + 8*e + 4*q, 4)}, {vr(C1 + 4*q, 4)}, {c}')
        for q in range(2):
            c = '0' if q == 0 else vr(DI, 16)
            a(f'v_mfma_f32_32x32x16_bf16 {vr(DI,16)}, {vr(AOP + 8*e + 4*q, 4)}, {vr(NS1 + 4*q, 4)}, {c}')
    for e in range(2):
        DR, DI = (XF, XF + 16) if e == 0 else (184, 200)
        P = PK if e == 0 else 216
        for r0 in range(0, 16, 4):
            for r in range(r0, r0 + 4):
                a(f'v_mul_f32 v{1 + (r & 3)}, v{DR + r}, v{TWC + r}')
                a(f'v_mul_f32 v{232 + (r & 3)}, v{DI + r}, v{TWC + r}')
            for r in range(r0, r0 + 4):
                a(f'v_fmac_f32 v{1 + (r & 3)}, v{DI + r}, v{TWS + r}')
                a(f'v_fma_f32 v{232 + (r & 3)}, -v{DR + r}, v{TWS + r}, v{232 + (r & 3)}')
            for r in range(r0, r0 + 4):
                a(f'v_cvt_pk_bf16_f32 v{P + r}, v{1 + (r & 3)}, v{232 + (r & 3)}')
        for q in range(4):
            c = '0' if q == 0 else vr(D2 + 16 * e, 16)
            a(f'v_mfma_f32_32x32x16_bf16 {vr(D2 + 16*e, 16)}, {vr(C2 + 4*q, 4)}, {vr(P + 4*q, 4)}, {c}')
    a('s_nop 7')
    a('s_mov_b64 exec, 1')
    for e in range(2):
        a(f'v_mov_b32 v{D2 + 16*e}, v{ST + 4*e + 1}')
    a('s_mov_b64 exec, -1')
    for p in range(8):
        for e in range(2):
            a(f'v_cvt_pk_bf16_f32 v{XF + 2*p + e}, v{D2 + 16*e + 2*p}, v{D2 + 16*e + 2*p + 1}')
        kb = (p & 1) + 4 * (p >> 1)
        a(f'ds_write_b64 v{vEW}, {vr(XF + 2*p, 2)} offset:{kb * 32 * 8}')
    a('s_waitcnt lgkmcnt(0)')
    a('s_barrier')
    for t in range(2):
        a(f'ds_read_b128 {vr(RAW + 8*t, 4)}, v{vER} offset:{t * 512}')
        a(f'ds_read_b128 {vr(RAW + 8*t + 4, 4)}, v{vER} offset:{t * 512 + 16}')
    for t in range(2):
        a(f's_waitcnt lgkmcnt({2 - 2*t})')
        for m in range(4):
            a(f'v_mfma_f32_16x16x16_bf16 {vr(D2 + 16*t + 4*m, 4)}, {vr(R8, 2)}, {vr(RAW + 8*t + 2*m, 2)}, 0')
    if stamp:
        a('s_memtime s[56:57]')
    for t in range(2):
        for m in range(4):
            a(f'v_cvt_pk_bf16_f32 v{PK + 8*t + m}, v{D2 + 16*t + 4*m}, v{D2 + 16*t + 4*m + 1}')
            a(f'v_cvt_pk_bf16_f32 v{PK + 8*t + 4 + m}, v{D2 + 16*t + 4*m + 2}, v{D2 + 16*t + 4*m + 3}')
        a(f's_mov_b32 s{sT0}, {t * 4 * 8 * 16384}')
        a(f's_mov_b32 s{sT1}, {t * 4 * 8 * 16384 + 16384}')
        a(f'buffer_store_dwordx4 {vr(PK + 8*t, 4)}, v{vZ}, s[{SZ}:{SZ+3}], s{sT0} offen')
        a(f'buffer_store_dwordx4 {vr(PK + 8*t + 4, 4)}, v{vZ}, s[{SZ}:{SZ+3}], s{sT1} offen')
    if stamp:
        stamp_out(a, sW, 36)
    a.label(f'{base}_end')
    a('s_endpgm')
    return (''.join(descriptor(n, 240, 72, 240) for n in names), [(n, 256, 256, P1_LDS) for n in names])


def gen_p2(a, name='p2_kernel', stamp=False):
    SZ, SR, SI = 4, 8, 12
    sW, sT0, sT1, sK1, sCG = 20, 21, 22, 23, 24
    vL = 0
    RAW, WR, WI = 8, 24, 32
    FR, FI, IR, II = 40, 44, 48, 52
    TC, TS = 56, 60
    OP = 64
    DR, DI = 80, 96
    vZ, vW = 112, 116
    T1, T2 = 120, 124
    WF = 128
    kernel_start(a, name)
    if stamp:
        a('s_memtime s[50:51]\ns_memrealtime s[52:53]')
    a(f'''
    s_load_dwordx2 s[36:37], s[0:1], {KA_WS}
    s_load_dwordx4 s[32:35], s[0:1], {KA_WR}
    s_cmp_ge_u32 s2, 256
    s_cbranch_scc1 {name}_end
    v_lshrrev_b32 v1, 6, v0
    v_and_b32 v{vL}, 63, v0
    v_readfirstlane_b32 s{sW}, v1
    s_and_b32 s{sK1}, s2, 7
    s_lshr_b32 s{sCG}, s2, 3
    v_and_b32 v1, 7, v{vL}
    v_lshlrev_b32 v1, 5, v1
    v_bfe_u32 v2, v{vL}, 3, 1
    v_add_u32 v1, v1, v2
    v_lshrrev_b32 v2, 4, v{vL}
    v_lshl_add_u32 v1, v2, 3, v1
    v_lshlrev_b32 v1, 6, v1
    s_lshl_b32 s{sT0}, s{sW}, 4
    v_add_u32 v{vZ}, s{sT0}, v1
    v_and_b32 v1, 15, v{vL}
    v_lshl_add_u32 v1, v2, 6, v1
    v_lshl_add_u32 v1, v1, 3, s{sK1}
    v_mul_u32_u24 v3, 1026, v1
    s_lshl_b32 s{sT0}, s{sCG}, 5
    s_lshl_b32 s{sT1}, s{sW}, 3
    s_add_u32 s{sT0}, s{sT0}, s{sT1}
    v_add_u32 v{vW}, s{sT0}, v3
    s_lshl_b32 s{sT0}, s2, 14
    s_add_u32 s{sT0}, s{sT0}, {WS_Z}
    s_waitcnt lgkmcnt(0)
    ''')
    srd(a, SZ, 36, 37, f's{sT0}', 16384)
    for u in range(4):
        a(f'buffer_load_dwordx4 {vr(RAW + 4*u, 4)}, v{vZ}, s[{SZ}:{SZ+3}], 0 offen offset:{u * 128}')
    srd(a, SR, 32, 33, 0, 2048 * 513 * 2)
    srd(a, SI, 34, 35, 0, 2048 * 513 * 2)
    for r in range(4):
        a(f's_mov_b32 s{sT0}, {r * 128 * 1026}')
        a(f'buffer_load_dwordx2 {vr(WR + 2*r, 2)}, v{vW}, s[{SR}:{SR+3}], s{sT0} offen')
        a(f'buffer_load_dwordx2 {vr(WI + 2*r, 2)}, v{vW}, s[{SI}:{SI+3}], s{sT0} offen')
    a(f'''
    s_or_b32 s{sT0}, s{sCG}, s{sW}
    s_cmp_eq_u32 s{sT0}, 0
    s_cbranch_scc0 {name}_nonyq
    ''')
    for r in range(4):
        a(f's_mov_b32 s{sT0}, {r * 128 * 1026}')
        a(f'buffer_load_ushort v{DR + r}, v{vW}, s[{SR}:{SR+3}], s{sT0} offen offset:1024')
        a(f'buffer_load_ushort v{DI + r}, v{vW}, s[{SI}:{SI+3}], s{sT0} offen offset:1024')
    a('s_waitcnt vmcnt(0)')
    a(f's_mov_b32 s{sT0}, 0xffff0000')
    for r in range(4):
        a(f'v_and_or_b32 v{WR + 2*r}, v{WR + 2*r}, s{sT0}, v{DR + r}')
        a(f'v_and_or_b32 v{WI + 2*r}, v{WI + 2*r}, s{sT0}, v{DI + r}')
    a.label(f'{name}_nonyq')
    a(f'''
    v_and_b32 v1, 15, v{vL}
    v_cvt_f32_u32 v1, v1
    v_cvt_f32_u32 v2, v2
    v_mul_f32 v3, v1, v2
    v_mul_f32 v4, 0.25, v3
    ''')
    for u in range(4):
        sincos(a, 6, 7, 1, u / 16.0, 4, 5)
        a(f'v_cvt_pk_bf16_f32 v{FR + u}, v6, v7')
        a(f'v_cvt_pk_bf16_f32 v{FI + u}, -v7, v6')
        a(f'v_cvt_pk_bf16_f32 v{IR + u}, v6, -v7')
        a(f'v_cvt_pk_bf16_f32 v{II + u}, v7, v6')
    a(f'v_mul_f32 v4, {f32hex(4 / 256.0)}, v3')
    for r in range(4):
        sincos(a, TC + r, TS + r, 1, r / 256.0, 4, 5)
    if stamp:
        a('s_memtime s[54:55]')
    a('s_waitcnt vmcnt(8)')
    for j in range(4):
        for u in range(4):
            a(f'v_mov_b32 v{OP + 4*j + u}, v{RAW + 4*u + j}')

    def stage(atype, cr, ci):
        for j in range(4):
            for (d, c) in ((DR, cr), (DI, ci)):
                if atype:
                    a(f'v_mfma_f32_16x16x32_bf16 {vr(d + 4*j, 4)}, {vr(OP + 4*j, 4)}, {vr(c, 4)}, 0')
                else:
                    a(f'v_mfma_f32_16x16x32_bf16 {vr(d + 4*j, 4)}, {vr(c, 4)}, {vr(OP + 4*j, 4)}, 0')

    def cmul(j, cs, ss, conj, dst):
        for r in range(4):
            a(f'v_mul_f32 v{T1 + r}, v{DR + 4*j + r}, v{cs(r)}')
            a(f'v_mul_f32 v{T2 + r}, v{DI + 4*j + r}, v{cs(r)}')
        for r in range(4):
            n1, n2 = ('-', '') if conj else ('', '-')
            a(f'v_fma_f32 v{T1 + r}, {n1}v{DI + 4*j + r}, v{ss(r)}, v{T1 + r}')
            a(f'v_fma_f32 v{T2 + r}, {n2}v{DR + 4*j + r}, v{ss(r)}, v{T2 + r}')
        for r in range(4):
            a(f'v_cvt_pk_bf16_f32 v{dst(r)}, v{T1 + r}, v{T2 + r}')

    stage(True, FR, FI)
    for j in range(4):
        cmul(j, lambda r: TC + r, lambda r: TS + r, False, lambda r: OP + 4 * j + r)
    stage(False, FR, FI)
    a('s_waitcnt vmcnt(0)')
    scale = 2.0 / (2048 * 1024)
    a(f's_mov_b32 s{sT0}, {f32hex(scale)}')
    for j in range(4):
        for r in range(4):
            for (w, o) in ((WR, 0), (WI, 4)):
                src = w + 2 * r + (j >> 1)
                if j & 1:
                    a(f'v_and_b32 v{WF + o + r}, 0xffff0000, v{src}')
                else:
                    a(f'v_lshlrev_b32 v{WF + o + r}, 16, v{src}')
        for r in range(8):
            a(f'v_mul_f32 v{WF + r}, s{sT0}, v{WF + r}')
        cmul(j, lambda r: WF + r, lambda r: WF + 4 + r, True, lambda r: OP + 4 * j + r)
    stage(True, IR, II)
    for j in range(4):
        cmul(j, lambda r: TC + r, lambda r: TS + r, True, lambda r: OP + 4 * j + r)
    stage(False, IR, II)
    if stamp:
        a('s_memtime s[56:57]')
    for r in range(4):
        for j in range(4):
            a(f'v_cvt_pk_bf16_f32 v{RAW + 4*r + j}, v{DR + 4*j + r}, v{DI + 4*j + r}')
        a(f'buffer_store_dwordx4 {vr(RAW + 4*r, 4)}, v{vZ}, s[{SZ}:{SZ+3}], 0 offen offset:{r * 128}')
    if stamp:
        stamp_out(a, sW, 36)
    a.label(f'{name}_end')
    a('s_endpgm')
    return descriptor(name, 136, 72, 136), (name, 256, 256, 0)


P3_RS = 2048 + 64
P3_LDS = 8 * P3_RS


def gen_p3(a, names=('p3a_kernel', 'p3b_kernel'), stamp=False):
    SX, SZ, S1, SL = 4, 8, 12, 16
    sW, sT0, sT1, sR0, sR1 = 20, 21, 22, 23, 30
    vL = 0
    ZR = 8
    XR = 24
    CR, CI, TWC, TWS, C2, R8 = 40, 48, 56, 72, 88, 104
    BOP = 106
    D8 = 122
    AOP = 8
    DD = [(154, 170), (186, 202)]
    PK = [218, 234]
    vZ, vX, vEW, vER, vLN = 250, 251, 252, 253, 254
    ST = 106
    base = entries(a, names, stamp)
    a(f'''
    s_cmp_ge_u32 s2, 256
    s_cbranch_scc1 {base}_end
    v_lshrrev_b32 v1, 6, v0
    v_and_b32 v{vL}, 63, v0
    v_readfirstlane_b32 s{sW}, v1
    ''')
    srd(a, SZ, 36, 37, WS_Z, 4 << 20)
    z_voffset(a, vZ, vL, sW, 3, 4, sT0, sT1)
    for t in range(2):
        a(f's_mov_b32 s{sT0}, {t * 4 * 8 * 16384}')
        a(f's_mov_b32 s{sT1}, {t * 4 * 8 * 16384 + 16384}')
        a(f'buffer_load_dwordx4 {vr(ZR + 8*t, 4)}, v{vZ}, s[{SZ}:{SZ+3}], s{sT0} offen')
        a(f'buffer_load_dwordx4 {vr(ZR + 8*t + 4, 4)}, v{vZ}, s[{SZ}:{SZ+3}], s{sT1} offen')
    srd(a, SX, 32, 33, 0, 4 << 20)
    a(f'''
    v_and_b32 v1, 31, v{vL}
    v_lshrrev_b32 v2, 5, v{vL}
    v_lshlrev_b32 v3, 6, v1
    v_lshl_add_u32 v{vX}, v2, 5, v3
    s_lshl_b32 s{sR0}, s{sW}, 9
    s_add_u32 s{sR0}, s{sR0}, s2
    s_lshl_b32 s{sR0}, s{sR0}, 11
    s_add_u32 s{sR1}, s{sR0}, {256 * 2048}
    buffer_load_dwordx4 {vr(XR,4)}, v{vX}, s[{SX}:{SX+3}], s{sR0} offen
    buffer_load_dwordx4 {vr(XR+4,4)}, v{vX}, s[{SX}:{SX+3}], s{sR0} offen offset:16
    buffer_load_dwordx4 {vr(XR+8,4)}, v{vX}, s[{SX}:{SX+3}], s{sR1} offen
    buffer_load_dwordx4 {vr(XR+12,4)}, v{vX}, s[{SX}:{SX+3}], s{sR1} offen offset:16
    ''')
    srd(a, S1, 36, 37, WS_X1, 4 << 20)
    srd(a, SL, 36, 37, WS_LNX, 4 << 20)
    radix8_const(a, R8, vL, 3, +1)
    a(f'''
    v_lshrrev_b32 v3, 4, v{vL}
    v_mul_u32_u24 v3, {2 * P3_RS}, v3
    v_and_b32 v4, 15, v{vL}
    v_lshl_add_u32 v3, v4, 4, v3
    s_lshl_b32 s{sT0}, s{sW}, 9
    v_add_u32 v{vEW}, s{sT0}, v3
    v_lshl_add_u32 v3, v2, 7, v1
    v_lshlrev_b32 v3, 2, v3
    s_mul_i32 s{sT0}, s{sW}, {2 * P3_RS}
    v_add_u32 v{vER}, s{sT0}, v3
    s_and_b32 s{sT0}, s2, 7
    s_lshl_b32 s{sT0}, s{sT0}, 5
    s_lshr_b32 s{sT1}, s2, 3
    s_add_u32 s{sT0}, s{sT0}, s{sT1}
    s_lshr_b32 s{sT1}, s{sT0}, 2
    s_sub_u32 s{sT1}, 0, s{sT1}
    s_and_b32 s{sT1}, s{sT1}, 3
    v_lshlrev_b32 v3, 1, v2
    v_xor_b32 v3, s{sT1}, v3
    v_lshlrev_b32 v3, 4, v3
    v_lshl_add_u32 v3, v1, 14, v3
    s_lshl_b32 s{sT0}, s{sT0}, 6
    v_add_u32 v{vLN}, s{sT0}, v3
    ; n1 = pi(i) = 16*((i>>2)&1) + (i&3) + 4*(i>>3)
    v_bfe_u32 v3, v{vL}, 2, 1
    v_and_b32 v4, 3, v{vL}
    v_lshl_add_u32 v4, v3, 4, v4
    v_bfe_u32 v3, v{vL}, 3, 2
    v_lshl_add_u32 v4, v3, 2, v4
    v_cvt_f32_u32 v4, v4
    v_cvt_f32_u32 v2, v2
    v_cvt_f32_u32 v1, v1
    v_mul_f32 v3, v4, v2
    v_mul_f32 v5, {f32hex(4/32.0)}, v3
    ''')
    for q in range(2):
        for u in range(4):
            sincos(a, D8, D8 + 1, 4, (8 * q + u) / 32.0, 5, 6)
            a(f'v_cvt_pk_bf16_f32 v{CR + 4*q + u}, v{D8}, -v{D8+1}')
            a(f'v_cvt_pk_bf16_f32 v{CI + 4*q + u}, v{D8+1}, v{D8}')
    a('s_waitcnt vmcnt(4)')
    for t in range(2):
        for m in range(4):
            a(f'v_mov_b32 v{BOP + 8*t + 2*m}, v{ZR + 8*t + m}')
            a(f'v_mov_b32 v{BOP + 8*t + 2*m + 1}, v{ZR + 8*t + 4 + m}')
    for t in range(2):
        for m in range(4):
            a(f'v_mfma_f32_16x16x16_bf16 {vr(D8 + 16*t + 4*m, 4)}, {vr(R8, 2)}, {vr(BOP + 8*t + 2*m, 2)}, 0')
    a(f'v_mul_f32 v5, {f32hex(4/1024.0)}, v3')
    for r in range(8):
        sincos(a, TWC + r, TWS + r, 4, ((r & 3) + 8 * (r >> 2)) / 1024.0, 5, 6)
    for t in range(2):
        for m in range(4):
            a(f'v_cvt_pk_bf16_f32 v{ZR + 8*t + m}, v{D8 + 16*t + 4*m}, v{D8 + 16*t + 4*m + 1}')
            a(f'v_cvt_pk_bf16_f32 v{ZR + 8*t + 4 + m}, v{D8 + 16*t + 4*m + 2}, v{D8 + 16*t + 4*m + 3}')
        a(f'ds_write_b128 v{vEW}, {vr(ZR + 8*t, 4)} offset:{t * 256}')
        a(f'ds_write_b128 v{vEW}, {vr(ZR + 8*t + 4, 4)} offset:{t * 256 + P3_RS}')
    for r in range(8, 16):
        sincos(a, TWC + r, TWS + r, 4, ((r & 3) + 8 * (r >> 2)) / 1024.0, 5, 6)
    a('s_waitcnt lgkmcnt(0)')
    a('s_barrier')
    for e in range(2):
        for q in range(2):
            for u in (0, 2):
                o = (e * P3_RS) // 4
                a(f'v_add_u32 v7, {e * P3_RS + (8*q) * 128}, v{vER}')
                a(f'ds_read2_b32 {vr(AOP + 8*e + 4*q + u, 2)}, v7 offset0:{32*u} offset1:{32*(u+1)}')
    a(f'v_mul_f32 v3, v1, v2')
    a(f'v_mul_f32 v5, {f32hex(4/32.0)}, v3')
    for q in range(4):
        for u in range(4):
            sincos(a, D8, D8 + 1, 1, (8 * q + u) / 32.0, 5, 6)
            a(f'v_cvt_pk_bf16_f32 v{C2 + 4*q + u}, v{D8}, -v{D8+1}')
    if stamp:
        a('s_memtime s[54:55]')
    a('s_waitcnt lgkmcnt(0)')
    for e in range(2):
        a(f'v_readlane_b32 s{24 + e}, v{AOP + 8*e}, 0')
        a(f'v_writelane_b32 v{AOP + 8*e}, 0, 0')
    for e in range(2):
        DR, DI = DD[e]
        for (d, c) in ((DR, CR), (DI, CI)):
            for q in range(2):
                cc = '0' if q == 0 else vr(d, 16)
                a(f'v_mfma_f32_32x32x16_bf16 {vr(d,16)}, {vr(AOP + 8*e + 4*q, 4)}, {vr(c + 4*q, 4)}, {cc}')
    for e in range(2):
        a(f's_lshl_b32 s{24 + e}, s{24 + e}, 16')
        a(f'v_mul_f32 v1, 0.5, s{24+e}'.replace('v_mul_f32', 'v_mul_f32_e64'))
        for r in range(16):
            if r & 1:
                a(f'v_sub_f32 v{D8 + 16*e + r}, 0, v1')
            else:
                a(f'v_mov_b32 v{D8 + 16*e + r}, v1')
    for e in range(2):
        DR, DI = DD[e]
        P = PK[e]
        for r0 in range(0, 16, 4):
            for r in range(r0, r0 + 4):
                a(f'v_mul_f32 v{1 + (r & 3)}, v{DR + r}, v{TWC + r}')
                a(f'v_mul_f32 v{114 + (r & 3)}, v{DI + r}, v{TWC + r}')
            for r in range(r0, r0 + 4):
                a(f'v_fma_f32 v{1 + (r & 3)}, -v{DI + r}, v{TWS + r}, v{1 + (r & 3)}')
                a(f'v_fmac_f32 v{114 + (r & 3)}, v{DR + r}, v{TWS + r}')
            for r in range(r0, r0 + 4):
                a(f'v_cvt_pk_bf16_f32 v{P + r}, v{1 + (r & 3)}, v{114 + (r & 3)}')
        for q in range(4):
            a(f'v_mfma_f32_32x32x16_bf16 {vr(D8 + 16*e, 16)}, {vr(P + 4*q, 4)}, {vr(C2 + 4*q, 4)}, {vr(D8 + 16*e, 16)}')
    if stamp:
        a('s_memtime s[56:57]')
    a('s_waitcnt vmcnt(0)')
    for e in range(2):
        Y, XF = D8 + 16 * e, DD[e][0]
        for c in range(8):
            a(f'v_cvt_pk_bf16_f32 v{PK[e] + c}, v{Y + 2*c}, v{Y + 2*c + 1}')
        for c in range(8):
            a(f'v_lshlrev_b32 v{Y + 2*c}, 16, v{PK[e] + c}')
            a(f'v_and_b32 v{Y + 2*c + 1}, 0xffff0000, v{PK[e] + c}')
            a(f'v_lshlrev_b32 v{XF + 2*c}, 16, v{XR + 8*e + c}')
            a(f'v_and_b32 v{XF + 2*c + 1}, 0xffff0000, v{XR + 8*e + c}')
        for c in range(8):
            a(f'v_pk_add_f32 {vr(XF + 2*c, 2)}, {vr(XF + 2*c, 2)}, {vr(Y + 2*c, 2)}')
        for c in range(8):
            a(f'v_cvt_pk_bf16_f32 v{XR + 8*e + c}, v{XF + 2*c}, v{XF + 2*c + 1}')
        so = (sR0, sR1)[e]
        a(f'buffer_store_dwordx4 {vr(XR + 8*e, 4)}, v{vX}, s[{S1}:{S1+3}], s{so} offen')
        a(f'buffer_store_dwordx4 {vr(XR + 8*e + 4, 4)}, v{vX}, s[{S1}:{S1+3}], s{so} offen offset:16')
        for c in range(8):
            a(f'v_lshlrev_b32 v{XF + 2*c}, 16, v{XR + 8*e + c}')
            a(f'v_and_b32 v{XF + 2*c + 1}, 0xffff0000, v{XR + 8*e + c}')
        ln_stats(a, XF, ST + 4 * e, None)
        a(f'v_add_f32 v{ST + 4*e}, v{ST + 4*e}, v{ST + 4*e + 1}')
    wave_reduce(a, [ST, ST + 2, ST + 4, ST + 6], [24, 26, 27, 29])
    a('s_mov_b32 s25, 0')
    a('s_mov_b32 s28, 0')
    for e in range(2):
        ln_finish(a, 24 + 3 * e, 25 + 3 * e, 26 + 3 * e, ST + 4 * e)
    a(f'v_xor_b32 v1, 16, v{vLN}')
    for e in range(2):
        R, XF = ST + 4 * e, DD[e][0]
        for c in range(8):
            a(f'v_pk_fma_f32 {vr(XF + 2*c, 2)}, {vr(XF + 2*c, 2)}, {vr(R,2)}, {vr(R+2,2)} op_sel_hi:[1,0,0]')
        order = [0, 1, 4, 5, 2, 3, 6, 7]
        for i, c in enumerate(order):
            a(f'v_cvt_pk_bf16_f32 v{PK[e] + i}, v{XF + 2*c}, v{XF + 2*c + 1}')
        a(f's_lshl_b32 s{sT0}, s{sW}, 20')
        a(f's_add_u32 s{sT0}, s{sT0}, {e << 19}')
        a(f'buffer_store_dwordx4 {vr(PK[e], 4)}, v{vLN}, s[{SL}:{SL+3}], s{sT0} offen')
        a(f'buffer_store_dwordx4 {vr(PK[e] + 4, 4)}, v1, s[{SL}:{SL+3}], s{sT0} offen')
    if stamp:
        stamp_out(a, sW, 36)
    a.label(f'{base}_end')
    a('s_endpgm')
    return (''.join(descriptor(n, 256, 72, 256) for n in names), [(n, 256, 256, P3_LDS) for n in names])
```

```python
from build import *
from gen_g2 import *
from gen_p import *
import functools
P = functools.partial
LIST = ['p1a_kernel', 'p2_kernel', 'p3a_kernel', 'g1_kernel', 'g2a_kernel', 'p1b_kernel', 'p2_kernel', 'p3b_kernel', 'g1_kernel', 'g2b_kernel']
if __name__ == '__main__':
    assemble([gen_p1, gen_p2, gen_p3, gen_g1, gen_g2], LIST, 'full.s')
    assemble([P(g, stamp=True) for g in (gen_p1, gen_p2, gen_p3, gen_g1, gen_g2)], LIST, 'full_st.s')
```

```python
from asmlib import *

WS_Z, WS_X1, WS_LNX, WS_X2, WS_H = 0, 4 << 20, 8 << 20, 4 << 20, 16 << 20
WS_P = 4 << 20
H_BYTES = 128 * 112 * 1024
KA_X, KA_WR, KA_WI, KA_WG, KA_WU, KA_WD, KA_OUT, KA_DBG, KA_WS = 0, 8, 16, 32, 40, 48, 56, 64, 72


def kernel_start(a, name):
    a.raw('.p2align 8')
    a.raw(f'.globl {name}')
    a.raw(f'.type {name},@function')
    a.label(name)


def descriptor(name, vgpr, sgpr, accum):
    return f'''.p2align 6
.amdhsa_kernel {name}
  .amdhsa_next_free_vgpr {vgpr}
  .amdhsa_next_free_sgpr {sgpr}
  .amdhsa_accum_offset {accum}
  .amdhsa_group_segment_fixed_size 0
  .amdhsa_kernarg_size 80
  .amdhsa_user_sgpr_count 2
  .amdhsa_user_sgpr_kernarg_segment_ptr 1
  .amdhsa_system_sgpr_workgroup_id_x 1
  .amdhsa_float_denorm_mode_32 3
.end_amdhsa_kernel
'''


def srd(a, d, lo, hi, off, nbytes):
    if off == 0:
        a(f's_mov_b32 s{d}, s{lo}')
        a(f's_mov_b32 s{d+1}, s{hi}')
    else:
        o = off if isinstance(off, str) else hex(off)
        a(f's_add_u32 s{d}, s{lo}, {o}')
        a(f's_addc_u32 s{d+1}, s{hi}, 0')
    a(f's_mov_b32 s{d+2}, {hex(nbytes)}')
    a(f's_mov_b32 s{d+3}, 0x20000')


def f32hex(x):
    import struct
    return hex(struct.unpack('<I', struct.pack('<f', x))[0])


def stamp_out(a, sW, ws, alt=None):
    a(f'''
    s_waitcnt vmcnt(0)
    s_memtime s[58:59]
    s_memrealtime s[60:61]
    s_load_dword s63, s[0:1], {KA_DBG}
    s_waitcnt lgkmcnt(0)
    s_bfe_u32 s63, s63, 0x50009
    s_lshl_b32 s63, s63, 17
    s_lshl_b32 s62, s2, 3
    s_add_u32 s62, s62, s{sW}
    s_lshl_b32 s62, s62, 6
    s_add_u32 s62, s62, {40 << 20}
    s_add_u32 s62, s62, s63
    ''')
    if alt:
        a(f's_mov_b64 s[58:59], s[{alt}:{alt+1}]')
    srd(a, 64, ws, ws + 1, 's62', 64)
    for i in range(12):
        a(f'v_mov_b32 v{i}, s{50 + i}')
    a('v_mov_b32 v12, 0')
    a('s_mov_b64 exec, 1')
    for i in range(3):
        a(f'buffer_store_dwordx4 v[{4*i}:{4*i+3}], v12, s[64:67], 0 offen offset:{16*i}')
```

```python
from gen_common import *
import math

G1_ST = 31776
G1_GOFF, G1_UOFF, G1_JUNK = 16384, 23568, 30752
G1_NST = 4
G1_LDS = G1_ST * G1_NST


def gen_g1(a, name='g1_kernel', dma_at=(1, 5, 9, 13), rd_start=0, rd_step=1, prio=False, no_dma=False, no_rd=False, stamp=False, no_bar=False, same_tile=False, w_al=False, dma_sel=(0,1,2,3), lin_w=False, no_mfma=False, stamp_pro=False, trace=False, st_flags=' sc1', pf_wd=True):
    for s in range(448):
        assert (s * 4682) >> 16 == s // 14
    SA, SG, SU, SH = 4, 8, 12, 16
    sW, sMT, sNT, sOA, sOW, sMA, sMG, sMU, sCNT = 20, 21, 22, 23, 24, 25, 26, 27, 28
    sT0, sT1, sT2 = 29, 30, 31
    ACC = 0
    XF = [112, 128]
    WF = [144, 172]
    vX, vG, vM = [200, 201], [202, 203], [204, 205]
    vDA, vDW = 206, 207
    vL, vT0, vT1, vT2, vT3 = 208, 209, 210, 211, 212
    acc = lambda mt, t: ACC + (mt * 7 + t) * 4

    lin_w_code = f'''s_mul_i32 s{sT0}, s{sNT}, {32*7168}
    s_lshl_b32 s{sT1}, s{sW}, 10
    s_add_u32 s{sT0}, s{sT0}, s{sT1}
    s_cmp_eq_u32 s{sW}, 7
    s_cselect_b32 s{sT0}, 0x40000000, s{sT0}
    v_lshlrev_b32 v{vDW}, 4, v{vL}
    v_add_u32 v{vDW}, s{sT0}, v{vDW}''' if lin_w else ''
    wstep = 7168 if lin_w else 32 * 7168
    kernel_start(a, name)
    a(f'''
    s_cmp_ge_u32 s2, 256
    s_cbranch_scc1 {name}_end
    {'s_memtime s[50:51]' if stamp else ''}
    {'s_memrealtime s[52:53]' if stamp else ''}
    s_load_dwordx4 s[32:35], s[0:1], {KA_WG}
    s_load_dwordx2 s[36:37], s[0:1], {KA_WS}
    s_load_dwordx2 s[44:45], s[0:1], {KA_WD}
    v_lshrrev_b32 v{vT0}, 6, v0
    v_and_b32 v{vL}, 63, v0
    v_readfirstlane_b32 s{sW}, v{vT0}
    s_and_b32 s{sT0}, s2, 7
    s_lshr_b32 s{sT1}, s2, 3
    s_and_b32 s{sMT}, s{sT0}, 1
    s_lshl_b32 s{sMT}, s{sMT}, 2
    s_and_b32 s{sT2}, s{sT1}, 3
    s_add_u32 s{sMT}, s{sMT}, s{sT2}
    s_lshr_b32 s{sNT}, s{sT0}, 1
    s_lshl_b32 s{sNT}, s{sNT}, 3
    s_lshr_b32 s{sT2}, s{sT1}, 2
    s_add_u32 s{sNT}, s{sNT}, s{sT2}
    s_lshl_b32 s{sMA}, s{sW}, 11
    v_lshlrev_b32 v{vDA}, 4, v{vL}
    v_add_u32 v{vDA}, s{sMA}, v{vDA}
    s_lshl_b32 s{sT0}, s{sW}, 6
    v_add_u32 v{vT0}, s{sT0}, v{vL}
    v_mul_u32_u24 v{vT1}, 4682, v{vT0}
    v_lshrrev_b32 v{vT1}, 16, v{vT1}
    v_mul_u32_u24 v{vT2}, 14, v{vT1}
    v_sub_u32 v{vT2}, v{vT0}, v{vT2}
    v_mul_u32_u24 v{vT1}, 7168, v{vT1}
    v_lshl_add_u32 v{vDW}, v{vT2}, 4, v{vT1}
    s_mul_i32 s{sT0}, s{sNT}, {0 if same_tile else (256 if w_al else 224)}
    s_lshl_b32 s{sMG}, s{sW}, 10
    s_add_u32 s{sMU}, s{sMG}, {G1_UOFF}
    s_add_u32 s{sMG}, s{sMG}, {G1_GOFF}
    s_cmp_eq_u32 s{sW}, 7
    s_cselect_b32 s{sT0}, 0x40000000, s{sT0}
    s_cselect_b32 s{sMG}, {G1_JUNK}, s{sMG}
    s_cselect_b32 s{sMU}, {G1_JUNK}, s{sMU}
    v_add_u32 v{vDW}, s{sT0}, v{vDW}
    {lin_w_code}
    s_lshl_b32 s{sT0}, s{sMT}, 19
    {f's_mov_b32 s{sT0}, 0' if same_tile else ''}
    s_add_u32 s{sT0}, s{sT0}, {hex(WS_LNX)}
    s_waitcnt lgkmcnt(0)
    ''')
    if stamp_pro:
        a('s_memtime s[54:55]')
    srd(a, SA, 36, 37, f's{sT0}', 512 * 1024)
    srd(a, SG, 32, 33, 0, 1024 * 3584 * 2)
    srd(a, SU, 34, 35, 0, 1024 * 3584 * 2)
    srd(a, SH, 36, 37, WS_H, H_BYTES)
    a(f's_mov_b32 s{sOA}, 0')
    a(f's_mov_b32 s{sOW}, 0')

    def dma_ops(slot):
        b = slot * G1_ST
        return [
            [f's_add_u32 m0, s{sMA}, {b}', f'buffer_load_dwordx4 v{vDA}, s[{SA}:{SA+3}], s{sOA} offen lds'],
            [f'buffer_load_dwordx4 v{vDA}, s[{SA}:{SA+3}], s{sOA} offen offset:1024 lds', f's_add_u32 s{sOA}, s{sOA}, 16384'],
            [f's_add_u32 m0, s{sMG}, {b}', f'buffer_load_dwordx4 v{vDW}, s[{SG}:{SG+3}], s{sOW} offen lds'],
            [f's_add_u32 m0, s{sMU}, {b}', f'buffer_load_dwordx4 v{vDW}, s[{SU}:{SU+3}], s{sOW} offen lds',
             f's_add_u32 s{sOW}, s{sOW}, {wstep}'],
        ]

    def emit(groups):
        for grp in groups:
            for ins in grp:
                a(ins)

    emit(dma_ops(0))
    if stamp_pro:
        a('s_memtime s[56:57]')
    a(f'''
    v_and_b32 v{vT0}, 15, v{vL}
    v_lshrrev_b32 v{vT1}, 4, v{vL}
    v_lshrrev_b32 v{vT2}, 2, v{vT0}
    v_sub_u32 v{vT3}, 0, v{vT2}
    v_and_b32 v{vT3}, 3, v{vT3}
    v_xor_b32 v{vT3}, v{vT3}, v{vT1}
    v_lshlrev_b32 v{vT3}, 4, v{vT3}
    v_lshl_add_u32 v{vX[0]}, v{vT0}, 6, v{vT3}
    s_and_b32 s{sT0}, s{sW}, 3
    s_lshl_b32 s{sT0}, s{sT0}, 12
    v_add_u32 v{vX[0]}, s{sT0}, v{vX[0]}
    v_lshrrev_b32 v{vT3}, 1, v{vT1}
    v_lshl_add_u32 v{vT2}, v{vT3}, 4, v{vT2}
    v_and_b32 v{vT3}, 1, v{vT1}
    v_lshl_add_u32 v{vT2}, v{vT3}, 2, v{vT2}
    v_mul_u32_u24 v{vT2}, 224, v{vT2}
    s_lshr_b32 s{sT0}, s{sW}, 2
    s_mul_i32 s{sT0}, s{sT0}, 112
    v_add_u32 v{vT2}, s{sT0}, v{vT2}
    v_and_b32 v{vT3}, 3, v{vL}
    v_lshl_add_u32 v{vG[0]}, v{vT3}, 3, v{vT2}
    v_and_b32 v{vT3}, 1, v{vL}
    v_lshl_add_u32 v{vM[0]}, v{vT3}, 3, v{vT2}
    v_bfe_u32 v{vT3}, v{vL}, 1, 1
    v_mul_u32_u24 v{vT3}, {G1_UOFF - G1_GOFF}, v{vT3}
    v_add_u32 v{vM[0]}, v{vM[0]}, v{vT3}
    v_add_u32 v{vX[1]}, {2 * G1_ST}, v{vX[0]}
    v_add_u32 v{vG[1]}, {2 * G1_ST}, v{vG[0]}
    v_add_u32 v{vM[1]}, {2 * G1_ST}, v{vM[0]}
    ''')
    emit(dma_ops(1))

    def read_ops(slot, p):
        hi, b = slot >> 1, (slot & 1) * G1_ST
        ops = []
        xs = [f'ds_read_b128 {vr(XF[p] + 4 * mt, 4)}, v{vX[hi]} offset:{b + mt * 1024}' for mt in range(4)]
        ws = []
        for t in range(7):
            for jj in range(2):
                if t < 6:
                    off = b + (G1_UOFF if t & 1 else G1_GOFF) + (t >> 1) * 32 + jj * 8 * 224
                    ad = vG[hi]
                else:
                    off = b + G1_GOFF + 96 + jj * 8 * 224
                    ad = vM[hi]
                ws.append(f'ds_read_b64_tr_b16 {vr(WF[p] + 4 * t + 2 * jj, 2)}, v{ad} offset:{off}')
        return xs + ws

    def mfmas(p, first=False):
        out = []
        for t in range(7):
            for mt in range(4):
                c = '0' if first else vr(acc(mt, t), 4)
                out.append(f'v_mfma_f32_16x16x32_bf16 {vr(acc(mt, t), 4)}, {vr(WF[p] + 4 * t, 4)}, {vr(XF[p] + 4 * mt, 4)}, {c}')
        return out

    a('s_waitcnt vmcnt(4)')
    a('s_barrier')
    for ins in read_ops(0, 0):
        a(ins)
    if stamp and not stamp_pro:
        a('s_memtime s[54:55]')
    if stamp_pro:
        a('s_memtime s[68:69]')
    a('s_waitcnt lgkmcnt(0)')
    mf = mfmas(0, True)
    dm = dma_ops(2) + dma_ops(3)
    for i in range(12):
        a(mf[i])
        if i % 3 != 2:
            emit([dm.pop(0)])
    assert not dm
    a('s_waitcnt vmcnt(8)')
    a('s_barrier')
    rds, dm = read_ops(1, 1), dma_ops(0)
    for i in range(12, 28):
        a(mf[i])
        if rds:
            a(rds.pop(0))
        if i < 15:
            a(rds.pop(0))
        if i in (16, 19, 22, 25):
            emit([dm.pop(0)])
    assert not rds and not dm

    def step(u, dma, wait, reads, pf=False):
        p = u & 1
        a(f's_waitcnt vmcnt({wait}) lgkmcnt(0)')
        if reads:
            a('s_barrier')
        rds = read_ops((u + 1) % G1_NST, p ^ 1) if reads else []
        dms = dma_ops(u) if dma else []
        if pf:
            dms = [[f's_add_u32 m0, s{sMA}, {u * G1_ST}', f'buffer_load_dwordx4 v{vDA}, s[{SG}:{SG+3}], s{sOA} offen lds'],
                   [f'buffer_load_dwordx4 v{vDA}, s[{SG}:{SG+3}], s{sOA} offen offset:1024 lds'],
                   [f'buffer_load_dwordx4 v{vDA}, s[{SG}:{SG+3}], s{sOW} offen lds'],
                   [f'buffer_load_dwordx4 v{vDA}, s[{SG}:{SG+3}], s{sOW} offen offset:1024 lds']]
        for i, m in enumerate(mfmas(p)):
            a(m)
            if dms and i in dma_at:
                emit([dms.pop(0)])
            if rds:
                a(rds.pop(0))
        assert not rds and not dms

    a(f's_mov_b32 s{sCNT}, 7')
    a.raw('.p2align 6')
    a.label(f'{name}_loop')
    if trace:
        a('s_memtime s[70:71]')
        a('s_memrealtime s[72:73]')
        a('s_waitcnt lgkmcnt(0)')
        a(f's_sub_u32 s74, 7, s{sCNT}')
        a(f'v_cmp_eq_u32 vcc, s74, v{vL}')
        a('v_mov_b32 v213, s70')
        a('v_cndmask_b32 v214, v214, v213, vcc')
        a('v_mov_b32 v213, s72')
        a('v_cndmask_b32 v215, v215, v213, vcc')
    for u in (1, 2, 3, 0):
        step(u, True, 8, True)
    a(f's_sub_u32 s{sCNT}, s{sCNT}, 1')
    a(f's_cmp_lg_u32 s{sCNT}, 0')
    a(f's_cbranch_scc1 {name}_loop')
    if pf_wd:
        srd(a, SG, 44, 45, 0, 1024 * 3584 * 2)
        a(f's_lshl_b32 s{sOA}, s2, 15')
        a(f's_add_u32 s{sOW}, s{sOA}, 16384')
    step(1, False, 8, True, pf=pf_wd)
    step(2, False, 8 if pf_wd else 4, True)
    step(3, False, 63, False)

    if stamp and not stamp_pro:
        a('s_memtime s[56:57]')
    c1 = -2.0 * math.log2(math.e) * math.sqrt(2.0 / math.pi)
    c2 = c1 * 0.044715
    vC1, vONE, vTMP, vO = 112, 114, 116, 140
    vS1, vS2, vS3 = 200, 201, 202
    a(f'''
    s_mov_b32 s38, {f32hex(c2)}
    s_mov_b32 s39, {f32hex(c2)}
    v_mov_b32 v{vC1}, {f32hex(c1)}
    v_mov_b32 v{vC1+1}, {f32hex(c1)}
    v_mov_b32 v{vONE}, 1.0
    v_mov_b32 v{vONE+1}, 1.0
    s_and_b32 s{sT0}, s{sW}, 3
    s_lshl_b32 s{sT0}, s{sT0}, 2
    s_lshl_b32 s{sT1}, s{sMT}, 4
    s_add_u32 s{sT0}, s{sT0}, s{sT1}
    s_mul_i32 s{sT0}, s{sT0}, {112 * 1024}
    s_lshr_b32 s{sT1}, s{sW}, 2            ; nh
    s_lshl_b32 s40, s{sNT}, 1
    s_add_u32 s40, s40, s{sT1}
    s_and_b32 s40, s40, 31                 ; u & 31
    s_lshr_b32 s43, s{sNT}, 4
    s_mul_i32 s43, s43, 56                 ; 56 * K half
    s_add_u32 s40, s40, s43
    s_lshl_b32 s40, s40, 10
    s_add_u32 s40, s40, s{sT0}
    s_and_b32 s41, s{sNT}, 15
    s_add_u32 s41, s41, s43
    s_add_u32 s41, s41, 32
    s_lshl_b32 s41, s41, 10
    s_add_u32 s41, s41, s{sT0}             ; type-2
    s_lshr_b32 s42, s{sNT}, 1
    s_and_b32 s42, s42, 7
    s_add_u32 s42, s42, s43
    s_add_u32 s42, s42, 48
    s_lshl_b32 s42, s42, 10
    s_add_u32 s42, s42, s{sT0}             ; type-3
    v_lshlrev_b32 v{vS1}, 4, v{vL}
    v_and_b32 v{vT1}, 15, v{vL}
    v_lshlrev_b32 v{vT1}, 4, v{vT1}
    v_bfe_u32 v{vT0}, v{vL}, 4, 1
    v_mul_u32_u24 v{vT2}, {112 * 1024}, v{vT0}
    v_lshrrev_b32 v{vT3}, 5, v{vL}
    v_lshl_add_u32 v{vS2}, v{vT3}, 8, v{vT2}
    v_add_u32 v{vS2}, v{vS2}, v{vT1}
    s_lshl_b32 s{sT2}, s{sT1}, 9
    v_add_u32 v{vS2}, s{sT2}, v{vS2}
    v_lshl_add_u32 v{vT0}, v{vT0}, 1, v{vT3}
    v_mul_u32_u24 v{vS3}, {112 * 1024}, v{vT0}
    v_add_u32 v{vS3}, v{vS3}, v{vT1}
    s_and_b32 s{sT2}, s{sNT}, 1
    s_lshl_b32 s{sT2}, s{sT2}, 1
    s_add_u32 s{sT2}, s{sT2}, s{sT1}
    s_lshl_b32 s{sT2}, s{sT2}, 8
    v_add_u32 v{vS3}, s{sT2}, v{vS3}
    ''')

    def gelu4(g, u, out):
        T, P = vTMP, vTMP + 4
        for h in (0, 2):
            a(f'v_pk_mul_f32 {vr(T+h,2)}, {vr(g+h,2)}, {vr(g+h,2)}')
        for h in (0, 2):
            a(f'v_pk_fma_f32 {vr(T+h,2)}, {vr(T+h,2)}, s[38:39], {vr(vC1,2)}')
        for h in (0, 2):
            a(f'v_pk_mul_f32 {vr(T+h,2)}, {vr(T+h,2)}, {vr(g+h,2)}')
        for h in range(4):
            a(f'v_exp_f32 v{T+h}, v{T+h}')
        for h in (0, 2):
            a(f'v_pk_mul_f32 {vr(P+h,2)}, {vr(g+h,2)}, {vr(u+h,2)}')
        for h in (0, 2):
            a(f'v_pk_add_f32 {vr(T+h,2)}, {vr(T+h,2)}, {vr(vONE,2)}')
        for h in range(4):
            a(f'v_rcp_f32 v{T+h}, v{T+h}')
        for h in (0, 2):
            a(f'v_pk_mul_f32 {vr(P+h,2)}, {vr(P+h,2)}, {vr(T+h,2)}')
        a(f'v_cvt_pk_bf16_f32 v{out}, v{P}, v{P+1}')
        a(f'v_cvt_pk_bf16_f32 v{out+1}, v{P+2}, v{P+3}')

    M3 = vO + 24
    for mt in range(4):
        o = vO + 4 * mt
        o2 = vO + 16 + 4 * (mt >> 1)
        gelu4(acc(mt, 0), acc(mt, 1), o)
        gelu4(acc(mt, 2), acc(mt, 3), o + 2)
        a(f'buffer_store_dwordx4 {vr(o,4)}, v{vS1}, s[{SH}:{SH+3}], s40 offen{st_flags}')
        gelu4(acc(mt, 4), acc(mt, 5), o2 + 2 * (mt & 1))
        if mt & 1:
            a(f'v_permlane16_swap_b32 v{o2}, v{o2+2}')
            a(f'v_permlane16_swap_b32 v{o2+1}, v{o2+3}')
            a(f'buffer_store_dwordx4 {vr(o2,4)}, v{vS2}, s[{SH}:{SH+3}], s41 offen{st_flags}')
            a(f's_add_u32 s41, s41, {2 * 112 * 1024}')
            for r in range(4):
                a(f'v_permlane32_swap_b32 v{acc(mt-1,6)+r}, v{acc(mt,6)+r}')
            gelu4(acc(mt - 1, 6), acc(mt, 6), M3 + 2 * (mt >> 1))
        if mt < 3:
            a(f's_add_u32 s40, s40, {112 * 1024}')
    a(f'v_permlane16_swap_b32 v{M3}, v{M3+2}')
    a(f'v_permlane16_swap_b32 v{M3+1}, v{M3+3}')
    a(f'buffer_store_dwordx4 {vr(M3,4)}, v{vS3}, s[{SH}:{SH+3}], s42 offen{st_flags}')
    if trace:
        a('s_memtime s[70:71]')
        a('s_memrealtime s[72:73]')
        a('s_load_dword s63, s[0:1], 64')
        a('s_waitcnt lgkmcnt(0)')
        a('v_writelane_b32 v214, s70, 7')
        a('v_writelane_b32 v215, s72, 7')
        a('v_writelane_b32 v214, s50, 8')
        a('v_writelane_b32 v215, s52, 8')
        a('s_bfe_u32 s63, s63, 0x50009')
        a('s_lshl_b32 s63, s63, 20')
        a('s_lshl_b32 s62, s2, 3')
        a(f's_add_u32 s62, s62, s{sW}')
        a('s_lshl_b32 s62, s62, 9')
        a('s_add_u32 s62, s62, s63')
        a(f's_add_u32 s62, s62, {44 << 20}')
        srd(a, 64, 36, 37, 's62', 512)
        a(f'v_lshlrev_b32 v213, 3, v{vL}')
        a('buffer_store_dwordx2 v[214:215], v213, s[64:67], 0 offen')
    if stamp:
        stamp_out(a, sW, 36, 68 if stamp_pro else None)
    a.label(f'{name}_end')
    a('s_endpgm')
    return descriptor(name, 216, 80, 216), (name, 256, 512, G1_LDS)
```

```python
from gen_common import *

G2_ST = 32768
G2_LDS = 4 * G2_ST
MT_STRIDE = 112 * 1024


def gen_g2n(a, names=('g2a_kernel', 'g2b_kernel'), split=2, stamp=False, dma_at=(0, 3, 6, 9), st_flags=' sc1'):
    if split == 2:
        names = names[:1]
    SH, SD, SR, SO = 4, 8, 12, 16
    sW, sM, sN, sA, sLo, sHiD, sStep, sIt, sMA, sK = 20, 21, 22, 23, 24, 25, 26, 27, 28, 44
    sT0, sT1, sT2, sLo2, sLo3, sHi = 29, 30, 31, 42, 43, 45
    ACC = 0
    acc = lambda q, t: ACC + (q * 4 + t) * 4
    HF = [64, 80]
    WF = [96, 112]
    vH = [128, 129]
    vWt = [[130, 131, 132, 133], [134, 135, 136, 137]]
    vDA, vDB, vL, vT0, vT1, vT2, vT3, vO = 138, 139, 140, 141, 142, 143, 144, 145
    vRes = 148
    base = names[0][:-8]
    nwg = 128 * split
    for li, name in enumerate(names):
        kernel_start(a, name)
        if stamp:
            a('s_memtime s[50:51]\ns_memrealtime s[52:53]')
        a(f's_load_dwordx2 s[36:37], s[0:1], {KA_WS}')
        a(f's_load_dwordx4 s[32:35], s[0:1], {KA_WD}')
        if li == 0 and split == 1:
            a('s_waitcnt lgkmcnt(0)')
            a(f's_add_u32 s34, s36, {hex(WS_X2)}')
            a(f's_addc_u32 s35, s37, 0')
            a(f's_branch {base}_body')
    a.label(f'{base}_body')
    a(f'''
    s_cmp_ge_u32 s2, {nwg}
    s_cbranch_scc1 {base}_end
    v_lshrrev_b32 v{vT0}, 6, v0
    v_and_b32 v{vL}, 63, v0
    v_readfirstlane_b32 s{sW}, v{vT0}
    s_and_b32 s{sT0}, s2, 7
    s_lshr_b32 s{sT1}, s2, 3
    ''')
    if split == 2:
        a(f'''
        s_and_b32 s{sK}, s{sT0}, 1
        s_lshr_b32 s{sM}, s{sT0}, 1
        s_lshl_b32 s{sM}, s{sM}, 2
        s_and_b32 s{sT2}, s{sT1}, 3
        s_add_u32 s{sM}, s{sM}, s{sT2}
        s_lshr_b32 s{sN}, s{sT1}, 2
        ''')
    else:
        a(f'''
        s_mov_b32 s{sK}, 0
        s_lshr_b32 s{sM}, s{sT0}, 1
        s_lshl_b32 s{sM}, s{sM}, 2
        s_and_b32 s{sT2}, s{sT1}, 3
        s_add_u32 s{sM}, s{sM}, s{sT2}
        s_and_b32 s{sN}, s{sT0}, 1
        s_lshl_b32 s{sN}, s{sN}, 2
        s_lshr_b32 s{sT2}, s{sT1}, 2
        s_add_u32 s{sN}, s{sN}, s{sT2}
        ''')
    a(f'''
    s_mul_i32 s{sT0}, s{sW}, {MT_STRIDE}
    v_lshlrev_b32 v{vDA}, 4, v{vL}
    v_add_u32 v{vDA}, s{sT0}, v{vDA}
    s_mul_i32 s{sA}, s{sK}, {56 * 1024}
    s_lshl_b32 s{sMA}, s{sW}, 11
    v_lshrrev_b32 v{vT0}, 4, v{vL}
    s_and_b32 s{sT0}, s{sW}, 1
    s_lshl_b32 s{sT0}, s{sT0}, 2
    v_add_u32 v{vT1}, s{sT0}, v{vT0}
    v_lshlrev_b32 v{vT1}, 1, v{vT1}
    v_and_b32 v{vT2}, 15, v{vL}
    v_xor_b32 v{vT1}, v{vT1}, v{vT2}
    v_lshlrev_b32 v{vT1}, 4, v{vT1}
    v_lshl_add_u32 v{vDB}, v{vT0}, 11, v{vT1}
    s_lshl_b32 s{sT0}, s{sN}, 8
    v_add_u32 v{vDB}, s{sT0}, v{vDB}
    s_lshr_b32 s{sT0}, s{sW}, 2            ; ks
    s_and_b32 s{sT1}, s{sW}, 3             ; g
    s_mul_i32 s{sT2}, s{sK}, 1792
    s_mul_i32 s{sLo}, s{sT0}, 56
    s_lshl_b32 s{sLo3}, s{sT1}, 2
    s_add_u32 s{sLo}, s{sLo}, s{sLo3}
    s_add_u32 s{sLo}, s{sLo}, s{sT2}
    s_lshl_b32 s{sLo}, s{sLo}, 11
    s_mul_i32 s{sLo2}, s{sT0}, 112
    s_lshr_b32 s{sLo3}, s{sT1}, 1
    s_mul_i32 s{sLo3}, s{sLo3}, 56
    s_add_u32 s{sLo2}, s{sLo2}, s{sLo3}
    s_and_b32 s{sLo3}, s{sT1}, 1
    s_lshl_b32 s{sLo3}, s{sLo3}, 3
    s_add_u32 s{sLo2}, s{sLo2}, s{sLo3}
    s_add_u32 s{sLo2}, s{sLo2}, s{sT2}
    s_add_u32 s{sLo2}, s{sLo2}, 32
    s_lshl_b32 s{sLo2}, s{sLo2}, 11
    s_mul_i32 s{sLo3}, s{sT0}, 224
    s_mul_i32 s{sT1}, s{sT1}, 56
    s_add_u32 s{sLo3}, s{sLo3}, s{sT1}
    s_add_u32 s{sLo3}, s{sLo3}, s{sT2}
    s_add_u32 s{sLo3}, s{sLo3}, 48
    s_lshl_b32 s{sLo3}, s{sLo3}, 11
    s_mov_b32 s46, s{sLo}
    s_mov_b32 s{sHiD}, {16 * 2048 - 1024}
    s_mov_b32 s{sStep}, {112 * 2048}
    s_mul_i32 s{sT0}, s{sM}, {8 * MT_STRIDE}
    s_add_u32 s{sT0}, s{sT0}, {hex(WS_H)}
    s_waitcnt lgkmcnt(0)
    ''')
    srd(a, SH, 36, 37, f's{sT0}', 8 * MT_STRIDE)
    srd(a, SD, 32, 33, 0, 3584 * 1024 * 2)

    def dma_ops(slot):
        b = slot * G2_ST
        return [
            [f's_add_u32 m0, s{sMA}, {b}', f'buffer_load_dwordx4 v{vDA}, s[{SH}:{SH+3}], s{sA} offen lds'],
            [f'buffer_load_dwordx4 v{vDA}, s[{SH}:{SH+3}], s{sA} offen offset:1024 lds', f's_add_u32 s{sA}, s{sA}, 2048'],
            [f's_add_u32 m0, s{sMA}, {b + 16384}', f's_add_u32 s{sHi}, s{sLo}, s{sHiD}',
             f'buffer_load_dwordx4 v{vDB}, s[{SD}:{SD+3}], s{sLo} offen lds'],
            [f'buffer_load_dwordx4 v{vDB}, s[{SD}:{SD+3}], s{sHi} offen offset:1024 lds', f's_add_u32 s{sLo}, s{sLo}, s{sStep}'],
        ]

    def emit(groups):
        for g in groups:
            for ins in g:
                a(ins)

    emit(dma_ops(0))
    a(f'''
    s_lshr_b32 s{sT0}, s{sW}, 2            ; kh
    s_bfe_u32 s{sT1}, s{sW}, 0x10001       ; wm
    s_lshl_b32 s{sT1}, s{sT1}, 13
    s_lshl_b32 s{sT2}, s{sT0}, 10
    s_add_u32 s{sT1}, s{sT1}, s{sT2}
    v_lshlrev_b32 v{vH[0]}, 4, v{vL}
    v_add_u32 v{vH[0]}, s{sT1}, v{vH[0]}
    s_lshl_b32 s{sT2}, s{sT0}, 12
    v_xor_b32 v{vH[0]}, s{sT2}, v{vH[0]}
    v_add_u32 v{vH[1]}, {2 * G2_ST}, v{vH[0]}
    v_lshrrev_b32 v{vT0}, 4, v{vL}
    v_bfe_u32 v{vT1}, v{vL}, 2, 2
    v_lshlrev_b32 v{vT2}, 11, v{vT0}
    v_lshl_add_u32 v{vT2}, v{vT1}, 8, v{vT2}
    v_and_b32 v{vT3}, 3, v{vL}
    v_lshl_add_u32 v{vT2}, v{vT3}, 3, v{vT2}
    s_lshl_b32 s{sT2}, s{sT0}, 13
    s_add_u32 s{sT2}, s{sT2}, 16384
    v_add_u32 v{vT2}, s{sT2}, v{vT2}
    v_and_b32 v{vT0}, 1, v{vT0}
    v_lshl_add_u32 v{vT1}, v{vT0}, 2, v{vT1}
    s_and_b32 s{sT2}, s{sW}, 1
    s_lshl_b32 s{sT2}, s{sT2}, 2
    v_xor_b32 v{vT1}, s{sT2}, v{vT1}
    ''')
    for t in range(4):
        a(f'v_xor_b32 v{vT0}, {t}, v{vT1}')
        a(f'v_lshl_add_u32 v{vWt[0][t]}, v{vT0}, 5, v{vT2}')
        a(f'v_add_u32 v{vWt[1][t]}, {2 * G2_ST}, v{vWt[0][t]}')
    emit(dma_ops(1))

    def read_ops(slot, p):
        hi, b = slot >> 1, (slot & 1) * G2_ST
        xs = []
        for q in range(4):
            xs.append((q, f'ds_read_b128 {vr(HF[p] + 4*q, 4)}, v{vH[hi] if q < 2 else vH[hi] + 20} offset:{b + (q & 1) * 2048}'))
        ws = []
        for t in range(4):
            for jj in range(2):
                ws.append(f'ds_read_b64_tr_b16 {vr(WF[p] + 4*t + 2*jj, 2)}, v{vWt[hi][t]} offset:{b + jj * 1024}')
        xs = [x for _, x in xs]
        return [ws[0], ws[1], xs[0], xs[1], xs[2], xs[3]] + ws[2:]

    a(f'v_xor_b32 v{vH[0]+20}, 4096, v{vH[0]}')
    a(f'v_xor_b32 v{vH[1]+20}, 4096, v{vH[1]}')
    vRes = 152

    def mfmas(p, first=False):
        out = []
        for t in range(4):
            for q in range(4):
                c = '0' if first else vr(acc(q, t), 4)
                out.append(f'v_mfma_f32_16x16x32_bf16 {vr(acc(q, t), 4)}, {vr(WF[p] + 4*t, 4)}, {vr(HF[p] + 4*q, 4)}, {c}')
        return out

    a('s_waitcnt vmcnt(4)')
    a('s_barrier')
    for ins in read_ops(0, 0):
        a(ins)
    if stamp:
        a('s_memtime s[54:55]')
    nst = 28 * (3 - split)
    a('s_waitcnt lgkmcnt(0)')
    mf = mfmas(0, True)
    dm = dma_ops(2) + dma_ops(3)
    for i in range(8):
        a(mf[i])
        emit([dm[i]])
    a('s_waitcnt vmcnt(8)')
    a('s_barrier')
    rds = read_ops(1, 1)
    dm = dma_ops(0)
    for i in range(8, 16):
        a(mf[i])
        a(rds.pop(0))
        if i & 1:
            emit([dm.pop(0)])
        if i & 1 == 0:
            a(rds.pop(0))
    assert not rds and not dm

    def step(u, dma, wait, reads, extra=()):
        p = u & 1
        a(f's_waitcnt vmcnt({wait}) lgkmcnt(0)')
        if reads:
            a('s_barrier')
        rds = read_ops((u + 1) & 3, p ^ 1) if reads else []
        dms = dma_ops(u) if dma else []
        extra = list(extra)
        for i, m in enumerate(mfmas(p)):
            a(m)
            if dms and i in dma_at:
                emit([dms.pop(0)])
            if rds and i < 12:
                a(rds.pop(0))
            if extra and i & 1:
                a(extra.pop(0))
        assert not rds and not dms and not extra

    a(f's_mov_b32 s{sIt}, 0')
    a.raw('.p2align 6')
    a.label(f'{base}_loop')
    step(1, True, 8, True)
    step(2, True, 8, True)
    step(3, True, 8, True)
    nit = nst // 4 - 1
    sw = [(2, sLo2, 4, 224), (4, sLo3, 4, 448)]
    if split == 1:
        sw += [(9, sLo2, 4, 224), (11, sLo3, 4, 448)]
    for (it, lo, hid, stp) in sw:
        a(f's_cmp_eq_u32 s{sIt}, {it}')
        if lo is None:
            lo = sLo2 if hid == 56 else sLo3
        a(f's_cselect_b32 s{sLo}, s{lo}, s{sLo}')
        a(f's_cselect_b32 s{sHiD}, {hid * 2048 - 1024}, s{sHiD}')
        a(f's_cselect_b32 s{sStep}, {stp * 2048}, s{sStep}')
    if split == 1:
        a(f'''
        s_cmp_eq_u32 s{sIt}, 5
        s_cbranch_scc0 {base}_nosw
        s_add_u32 s{sLo}, s46, {1792 * 2048}
        s_add_u32 s{sLo2}, s{sLo2}, {1792 * 2048}
        s_add_u32 s{sLo3}, s{sLo3}, {1792 * 2048}
        s_mov_b32 s{sHiD}, {16 * 2048 - 1024}
        s_mov_b32 s{sStep}, {112 * 2048}
        ''')
        a.label(f'{base}_nosw')
    a(f's_cmp_eq_u32 s{sIt}, {nit - 1}')
    a(f's_cselect_b32 s{sLo}, 0x40000000, s{sLo}')
    a(f's_cselect_b32 s{sA}, 0x40000000, s{sA}')
    step(0, True, 8, True)
    a(f's_add_u32 s{sIt}, s{sIt}, 1')
    a(f's_cmp_lg_u32 s{sIt}, {nit}')
    a(f's_cbranch_scc1 {base}_loop')
    pre = f'''s_lshr_b32 s{sT0}, s{sM}, 1
    s_lshl_b32 s{sT0}, s{sT0}, 8
    s_lshl_b32 s{sT1}, s{sM}, 2
    s_bfe_u32 s{sT2}, s{sW}, 0x10001
    s_lshl_b32 s{sT2}, s{sT2}, 1
    s_add_u32 s{sT1}, s{sT1}, s{sT2}
    s_lshr_b32 s{sT2}, s{sW}, 2
    s_add_u32 s{sT1}, s{sT1}, s{sT2}'''.split('\n')
    pre2 = f'''s_and_b32 s{sT1}, s{sT1}, 7
    s_add_u32 s{sT0}, s{sT0}, s{sT1}
    s_lshl_b32 s{sT0}, s{sT0}, 11
    s_lshl_b32 s{sT1}, s{sN}, 8
    s_add_u32 s{sT0}, s{sT0}, s{sT1}
    s_and_b32 s{sT1}, s{sW}, 1
    s_lshl_b32 s{sT1}, s{sT1}, 7
    s_add_u32 s{sT0}, s{sT0}, s{sT1}'''.split('\n')
    step(1, False, 8, True, extra=pre)
    step(2, False, 0, True, extra=pre2)
    a(f'''
    v_and_b32 v{vT0}, 15, v{vL}
    v_lshlrev_b32 v{vO}, 14, v{vT0}
    v_bfe_u32 v{vT0}, v{vL}, 4, 1
    v_lshl_add_u32 v{vO}, v{vT0}, 5, v{vO}
    v_lshrrev_b32 v{vT0}, 5, v{vL}
    v_lshl_add_u32 v{vO}, v{vT0}, 4, v{vO}
    v_add_u32 v{vO}, s{sT0}, v{vO}
    ''')
    res = []
    srd(a, SR, 36, 37, WS_X1, 4 << 20)
    if split == 1:
        srd(a, SO, 34, 35, 0, 4 << 20)
    else:
        a(f's_lshl_b32 s{sT1}, s{sK}, 22')
        a(f's_sub_u32 s{SR+2}, s{SR+2}, s{sT1}')
        a(f's_add_u32 s{sT1}, s{sT1}, {hex(WS_P)}')
        srd(a, SO, 36, 37, f's{sT1}', 4 << 20)
    a(f's_mov_b32 s{sT1}, {128 * 2048}')
    for q in range(2):
        for tp in range(2):
            so = '0' if q == 0 else f's{sT1}'
            res.append(f'buffer_load_dwordx4 {vr(vRes + 8*q + 4*tp, 4)}, v{vO}, s[{SR}:{SR+3}], {so} offen offset:{64*tp}')
    step(3, False, 63, False, extra=res)
    if stamp:
        a('s_memtime s[56:57]')
    a(f'''
    s_lshl_b32 s{sT0}, s{sW}, 13
    v_lshlrev_b32 v{vT0}, 4, v{vL}
    v_add_u32 v{vT0}, s{sT0}, v{vT0}
    v_xor_b32 v{vT1}, {4 << 13}, v{vT0}
    ''')
    for i in range(8):
        a(f'ds_write_b128 v{vT0}, {vr(ACC + 32 + 4*i, 4)} offset:{i * 1024}')
    a('s_waitcnt lgkmcnt(0)')
    a('s_barrier')
    for i in range(8):
        a(f'ds_read_b128 {vr(64 + 4*i, 4)}, v{vT1} offset:{i * 1024}')
    for q in range(2):
        for tp in range(2):
            i0 = q * 4 + tp * 2
            a(f's_waitcnt lgkmcnt({6 - i0})')
            for h in range(0, 8, 2):
                a(f'v_pk_add_f32 {vr(4*i0 + h, 2)}, {vr(4*i0 + h, 2)}, {vr(64 + 4*i0 + h, 2)}')
            P = 96 + 4 * (q * 2 + tp)
            if True:
                for r in range(4):
                    a(f'v_permlane16_swap_b32 v{4*i0 + r}, v{4*i0 + 4 + r}')
                if q == 0 and tp == 0:
                    a('s_waitcnt vmcnt(0)')
                R = vRes + 8 * q + 4 * tp
                for c in range(4):
                    a(f'v_lshlrev_b32 v{112 + 2*c}, 16, v{R + c}')
                    a(f'v_and_b32 v{113 + 2*c}, 0xffff0000, v{R + c}')
                for c in range(4):
                    a(f'v_pk_add_f32 {vr(112 + 2*c, 2)}, {vr(112 + 2*c, 2)}, {vr(4*i0 + 2*c, 2)}')
                for c in range(4):
                    a(f'v_cvt_pk_bf16_f32 v{P + c}, v{112 + 2*c}, v{113 + 2*c}')
            else:
                for c in range(4):
                    a(f'v_cvt_pk_bf16_f32 v{P + c}, v{4*i0 + 2*c}, v{4*i0 + 2*c + 1}')
                a(f'v_permlane16_swap_b32 v{P}, v{P + 2}')
                a(f'v_permlane16_swap_b32 v{P + 1}, v{P + 3}')
            so = '0' if q == 0 else f's{sT1}'
            a(f'buffer_store_dwordx4 {vr(P, 4)}, v{vO}, s[{SO}:{SO+3}], {so} offen offset:{64*tp}{st_flags}')
    if stamp:
        stamp_out(a, sW, 36)
    a.label(f'{base}_end')
    a('s_endpgm')
    return (''.join(descriptor(n, 168, 72, 168) for n in names), [(n, nwg, 512, G2_LDS) for n in names])
```

```python
from gen_common import *

EPS = 1e-5
WB = 1024 * 3584 * 2


def sincos(a, dc, ds, fv, k, base, tmp):
    if base is None:
        a(f'v_mul_f32 v{tmp}, {f32hex(k)}, v{fv}')
    elif k == 0:
        tmp = base
    else:
        a(f'v_fmamk_f32 v{tmp}, v{fv}, {f32hex(k)}, v{base}')
    a(f'v_cos_f32 v{dc}, v{tmp}')
    a(f'v_sin_f32 v{ds}, v{tmp}')


def wave_reduce(a, regs, sdst):
    for m in ('row_shr:1', 'row_shr:2', 'row_shr:4', 'row_shr:8'):
        for r in regs:
            a(f'v_add_f32_dpp v{r}, v{r}, v{r} {m} row_mask:0xf bank_mask:0xf')
    for r in regs:
        a(f'v_add_f32_dpp v{r}, v{r}, v{r} row_bcast:15 row_mask:0xa bank_mask:0xf')
    for r in regs:
        a(f'v_add_f32_dpp v{r}, v{r}, v{r} row_bcast:31 row_mask:0xc bank_mask:0xf')
    for r, s in zip(regs, sdst):
        a(f'v_readlane_b32 s{s}, v{r}, 63')


PF_WGS = 256


def prefetch_role(a, label, endlabel, items):
    a.label(label)
    a(f's_cmp_ge_u32 s2, {256 + PF_WGS}')
    a(f's_cbranch_scc1 {endlabel}')
    for i, (ka, st, n) in enumerate(items):
        a(f's_load_dwordx2 s[{40 + 2*i}:{41 + 2*i}], s[0:1], {ka}')
    a(f's_sub_u32 s20, s2, 256')
    a(f's_lshl_b32 s20, s20, 12')
    a(f'v_lshlrev_b32 v1, 4, v0')
    a(f'v_add_u32 v1, s20, v1')
    a('s_waitcnt lgkmcnt(0)')
    r = 4
    for i, (ka, st, n) in enumerate(items):
        srd(a, 4, 40 + 2 * i, 41 + 2 * i, st, n)
        chunk = PF_WGS * 4096
        for c in range(-(-n // chunk)):
            a(f's_mov_b32 s21, {c * chunk}')
            a(f'buffer_load_dwordx4 {vr(r, 4)}, v1, s[4:7], s21 offen')
            r += 4
    a(f's_branch {endlabel}')


def entries(a, names, stamp):
    base = names[0][:-8]
    for li, name in enumerate(names):
        kernel_start(a, name)
        if stamp:
            a('s_memtime s[50:51]\ns_memrealtime s[52:53]')
        a(f's_load_dwordx2 s[36:37], s[0:1], {KA_WS}')
        a(f's_mov_b32 s38, {li}')
        if li == 0:
            a(f's_load_dwordx2 s[32:33], s[0:1], {KA_X}')
            a('s_waitcnt lgkmcnt(0)')
            a(f's_branch {base}_body')
        else:
            a('s_waitcnt lgkmcnt(0)')
            a(f's_add_u32 s32, s36, {hex(WS_X2)}')
            a(f's_addc_u32 s33, s37, 0')
    a.label(f'{base}_body')
    return base


def z_voffset(a, dst, vL, sW, t0, t1, sT0, sT1):
    a(f'''
    v_bfe_u32 v{t0}, v{vL}, 2, 2
    v_lshrrev_b32 v{t1}, 4, v{vL}
    v_lshlrev_b32 v{t0}, 17, v{t0}
    v_lshl_add_u32 v{t0}, v{t1}, 15, v{t0}
    v_and_b32 v{t1}, 3, v{vL}
    v_lshl_add_u32 v{dst}, v{t1}, 4, v{t0}
    s_and_b32 s{sT0}, s2, 7
    s_lshl_b32 s{sT0}, s{sT0}, 5
    s_lshr_b32 s{sT1}, s2, 3
    s_add_u32 s{sT0}, s{sT0}, s{sT1}
    s_lshl_b32 s{sT0}, s{sT0}, 6
    s_lshl_b32 s{sT1}, s{sW}, 20
    s_add_u32 s{sT0}, s{sT0}, s{sT1}
    v_add_u32 v{dst}, s{sT0}, v{dst}
    ''')


def radix8_const(a, dst, vL, t, sign, scale=None):
    t0, t1, t2, t3, t4 = t, t + 1, t + 2, t + 3, t + 4
    a(f'''
    v_bfe_u32 v{t0}, v{vL}, 1, 3
    v_lshrrev_b32 v{t1}, 4, v{vL}
    v_lshlrev_b32 v{t1}, 1, v{t1}
    v_and_b32 v{t2}, 1, v{vL}
    v_cvt_f32_u32 v{t2}, v{t2}
    v_mul_f32 v{t2}, 0.25, v{t2}
    ''')
    for e in range(2):
        if sign < 0:
            a(f'v_add_u32 v{t3}, {e}, v{t1}')
            a(f'v_lshl_add_u32 v{t3}, v{t3}, 8, s2')
            a(f'v_mul_u32_u24 v{t3}, v{t3}, v{t0}')
        else:
            a(f'v_add_u32 v{t4}, {e}, v{t1}')
            a(f'v_lshl_add_u32 v{t3}, v{t0}, 8, s2')
            a(f'v_mul_u32_u24 v{t3}, v{t3}, v{t4}')
        a(f'v_and_b32 v{t3}, 2047, v{t3}')
        a(f'v_cvt_f32_u32 v{t3}, v{t3}')
        a(f'v_fmamk_f32 v{t3}, v{t3}, {f32hex(-sign / 2048.0)}, v{t2}')
        a(f'v_cos_f32 v{t4}, v{t3}')
        a(f'v_sin_f32 v{t3}, v{t3}')
        if scale:
            a(f'v_mul_f32 v{t4}, {f32hex(scale)}, v{t4}')
            a(f'v_mul_f32 v{t3}, {f32hex(scale)}, v{t3}')
        a(f'v_cvt_pk_bf16_f32 v{dst + e}, v{t4}, v{t3}')


def ln_stats(a, X, ST, s_out):
    a(f'v_pk_add_f32 {vr(ST,2)}, {vr(X,2)}, {vr(X+2,2)}')
    a(f'v_pk_mul_f32 {vr(ST+2,2)}, {vr(X,2)}, {vr(X,2)}')
    for i in range(1, 8):
        if i > 1:
            a(f'v_pk_add_f32 {vr(ST,2)}, {vr(ST,2)}, {vr(X+2*i,2)}')
        a(f'v_pk_fma_f32 {vr(ST+2,2)}, {vr(X+2*i,2)}, {vr(X+2*i,2)}, {vr(ST+2,2)}')
    a(f'v_add_f32 v{ST+2}, v{ST+2}, v{ST+3}')


def ln_finish(a, s_se, s_so, s_sq, R):
    a(f'''
    v_mov_b32 v{R+2}, s{s_se}
    v_add_f32 v{R+2}, s{s_so}, v{R+2}
    v_mul_f32 v{R+2}, {f32hex(-1.0/1024)}, v{R+2}
    v_mov_b32 v{R+1}, {f32hex(EPS)}
    v_mov_b32 v{R}, s{s_sq}
    v_fmamk_f32 v{R}, v{R}, {f32hex(1.0/1024)}, v{R+1}
    v_fma_f32 v{R}, -v{R+2}, v{R+2}, v{R}
    v_max_f32 v{R}, v{R}, v{R+1}
    v_rsq_f32 v{R}, v{R}
    v_mul_f32 v{R+2}, v{R+2}, v{R}
    ''')


P1_E = 16384
P1_ES = 4096 + 128
P1_LDS = P1_E + 4 * P1_ES


def gen_p1(a, names=('p1a_kernel', 'p1b_kernel'), stamp=False):
    SX, SZ = 4, 8
    sW, sT0, sT1 = 20, 21, 22
    vL, vT = 0, 1
    RAW = 8
    C1, NS1, TWC, TWS, C2, R8 = 24, 32, 40, 56, 72, 88
    XF = 90
    ST = 122
    AOP = 8
    vZ, vLW, vLR, vEW, vER = 130, 131, 132, 133, 134
    D2 = 136
    PK = 168
    base = entries(a, names, stamp)
    a(f'''
    s_cmp_ge_u32 s2, 256
    s_cbranch_scc1 {base}_pf
    v_lshrrev_b32 v1, 6, v0
    v_and_b32 v{vL}, 63, v0
    v_readfirstlane_b32 s{sW}, v1
    v_lshlrev_b32 v2, 4, v{vL}
    s_add_u32 s40, s36, {hex(WS_X1)}
    s_addc_u32 s41, s37, 0
    s_cmp_eq_u32 s38, 0
    s_cselect_b32 s40, s32, s40
    s_cselect_b32 s41, s33, s41
    ''')
    srd(a, SX, 40, 41, 0, 4 << 20)
    a(f'''
    s_lshl_b32 s{sT0}, s{sW}, 9
    s_add_u32 s{sT0}, s{sT0}, s2
    s_lshl_b32 s{sT0}, s{sT0}, 11
    s_add_u32 s{sT1}, s{sT0}, {256 * 2048}
    buffer_load_dwordx4 {vr(RAW,4)}, v2, s[{SX}:{SX+3}], s{sT0} offen
    buffer_load_dwordx4 {vr(RAW+4,4)}, v2, s[{SX}:{SX+3}], s{sT0} offen offset:1024
    buffer_load_dwordx4 {vr(RAW+8,4)}, v2, s[{SX}:{SX+3}], s{sT1} offen
    buffer_load_dwordx4 {vr(RAW+12,4)}, v2, s[{SX}:{SX+3}], s{sT1} offen offset:1024
    s_mov_b32 s42, s{sT0}
    s_mov_b32 s43, s{sT1}
    v_mov_b32 v135, v2
    s_cmp_eq_u32 s38, 0
    s_cbranch_scc1 {base}_nopart
    ''')
    srd(a, 12, 36, 37, WS_P, 8 << 20)
    srd(a, 16, 32, 33, 0, 4 << 20)
    for k in range(2):
        for e in range(2):
            a(f's_add_u32 s44, s{42 + e}, {k << 22}')
            a(f'buffer_load_dwordx4 {vr(184 + 16*k + 8*e, 4)}, v2, s[12:15], s44 offen')
            a(f'buffer_load_dwordx4 {vr(188 + 16*k + 8*e, 4)}, v2, s[12:15], s44 offen offset:1024')
    a.label(f'{base}_nopart')
    srd(a, SZ, 36, 37, WS_Z, 4 << 20)
    a(f'''
    s_lshl_b32 s{sT0}, s{sW}, 12
    v_add_u32 v{vLW}, s{sT0}, v2
    v_lshrrev_b32 v3, 5, v{vL}
    v_bfe_u32 v4, v{vL}, 2, 2
    v_lshl_add_u32 v3, v3, 3, v4
    v_lshlrev_b32 v3, 6, v3
    v_bfe_u32 v4, v{vL}, 4, 1
    v_lshl_add_u32 v3, v4, 5, v3
    v_and_b32 v4, 3, v{vL}
    v_lshl_add_u32 v3, v4, 3, v3
    v_add_u32 v{vLR}, s{sT0}, v3
    s_mul_i32 s{sT0}, s{sW}, {P1_ES}
    s_add_u32 s{sT0}, s{sT0}, {P1_E}
    v_and_b32 v3, 31, v{vL}
    v_lshrrev_b32 v4, 5, v{vL}
    v_lshl_add_u32 v3, v4, 6, v3
    v_lshlrev_b32 v3, 3, v3
    v_add_u32 v{vEW}, s{sT0}, v3
    v_lshrrev_b32 v3, 4, v{vL}
    v_mul_u32_u24 v3, {P1_ES}, v3
    v_and_b32 v4, 15, v{vL}
    v_lshl_add_u32 v3, v4, 5, v3
    s_lshl_b32 s{sT0}, s{sW}, 10
    s_add_u32 s{sT0}, s{sT0}, {P1_E}
    v_add_u32 v{vER}, s{sT0}, v3
    ''')
    z_voffset(a, vZ, vL, sW, 3, 4, sT0, sT1)
    a(f'''
    v_and_b32 v1, 31, v{vL}
    v_cvt_f32_u32 v1, v1
    v_lshrrev_b32 v2, 5, v{vL}
    v_cvt_f32_u32 v2, v2
    v_mul_f32 v3, v1, v2
    v_mul_f32 v4, 0.25, v3
    ''')
    for q in range(2):
        for u in range(4):
            for e in range(2):
                sincos(a, XF + e, XF + 2 + e, 1, (16 * q + 2 * u + e) / 32.0, 4, 5)
            a(f'v_cvt_pk_bf16_f32 v{C1 + 4*q + u}, v{XF}, v{XF+1}')
            a(f'v_cvt_pk_bf16_f32 v{NS1 + 4*q + u}, -v{XF+2}, -v{XF+3}')
    a(f'v_mul_f32 v4, {f32hex(4/1024.0)}, v3')
    for r in range(16):
        sincos(a, TWC + r, TWS + r, 1, ((r & 3) + 8 * (r >> 2)) / 1024.0, 4, 5)
    a(f'''
    v_bfe_u32 v1, v{vL}, 1, 4
    v_cvt_f32_u32 v1, v1
    v_mul_f32 v3, v1, v2
    v_and_b32 v4, 1, v{vL}
    v_cvt_f32_u32 v4, v4
    v_mul_f32 v4, 0.25, v4
    v_fmamk_f32 v4, v3, {f32hex(4/32.0)}, v4
    ''')
    for q in range(4):
        for u in range(4):
            sincos(a, XF, XF + 1, 1, (u + 8 * q) / 32.0, 4, 5)
            a(f'v_cvt_pk_bf16_f32 v{C2 + 4*q + u}, v{XF}, v{XF+1}')
    radix8_const(a, R8, vL, 1, -1)
    if stamp:
        a('s_memtime s[54:55]')
    a(f'''
    s_cmp_eq_u32 s38, 0
    s_cbranch_scc1 {base}_nosum
    s_waitcnt vmcnt(0)
    ''')
    for e in range(2):
        for c in range(8):
            for (d, sreg) in ((XF, RAW + 8*e + c), (XF + 2, 184 + 8*e + c), (XF + 4, 200 + 8*e + c)):
                d += 6 * (c & 1)
                a(f'v_lshlrev_b32 v{d}, 16, v{sreg}')
                a(f'v_and_b32 v{d + 1}, 0xffff0000, v{sreg}')
            d = XF + 6 * (c & 1)
            a(f'v_pk_add_f32 {vr(d + 2, 2)}, {vr(d + 2, 2)}, {vr(d + 4, 2)}')
            a(f'v_pk_add_f32 {vr(d, 2)}, {vr(d, 2)}, {vr(d + 2, 2)}')
            a(f'v_cvt_pk_bf16_f32 v{RAW + 8*e + c}, v{d}, v{d + 1}')
        a(f'buffer_store_dwordx4 {vr(RAW + 8*e, 4)}, v135, s[16:19], s{42 + e} offen')
        a(f'buffer_store_dwordx4 {vr(RAW + 8*e + 4, 4)}, v135, s[16:19], s{42 + e} offen offset:1024')
    a(f's_branch {base}_ln')
    a.label(f'{base}_nosum')
    a('s_waitcnt vmcnt(0)')
    a.label(f'{base}_ln')
    for e in range(2):
        for c in range(8):
            a(f'v_lshlrev_b32 v{XF + 16*e + 2*c}, 16, v{RAW + 8*e + c}')
            a(f'v_and_b32 v{XF + 16*e + 2*c + 1}, 0xffff0000, v{RAW + 8*e + c}')
        ln_stats(a, XF + 16 * e, ST + 4 * e, None)
    wave_reduce(a, [ST, ST + 1, ST + 2, ST + 4, ST + 5, ST + 6], [24, 25, 26, 27, 28, 29])
    for e in range(2):
        ln_finish(a, 24 + 3 * e, 25 + 3 * e, 26 + 3 * e, ST + 4 * e)
    for e in range(2):
        R = ST + 4 * e
        for c in range(8):
            a(f'v_pk_fma_f32 {vr(XF + 16*e + 2*c, 2)}, {vr(XF + 16*e + 2*c, 2)}, {vr(R,2)}, {vr(R+2,2)} op_sel_hi:[1,0,0]')
        for c in range(8):
            a(f'v_cvt_pk_bf16_f32 v{RAW + 8*e + c}, v{XF + 16*e + 2*c}, v{XF + 16*e + 2*c + 1}')
        a(f'ds_write_b128 v{vLW}, {vr(RAW + 8*e, 4)} offset:{2048*e}')
        a(f'ds_write_b128 v{vLW}, {vr(RAW + 8*e + 4, 4)} offset:{2048*e + 1024}')
        a(f'v_mov_b32 v{R+1}, s{24 + 3*e}')
        a(f'v_subrev_f32 v{R+1}, s{25 + 3*e}, v{R+1}')
        a(f'v_mul_f32 v{R+1}, v{R+1}, v{R}')
    a('s_waitcnt lgkmcnt(0)')
    for e in range(2):
        for q in range(2):
            for jj in range(2):
                a(f'ds_read_b64_tr_b16 {vr(AOP + 8*e + 4*q + 2*jj, 2)}, v{vLR} offset:{2048*e + (16*q + 4*jj) * 64}')
    for e in range(2):
        a(f's_waitcnt lgkmcnt({4 - 4*e})')
        DR, DI = XF, XF + 16
        if e == 1:
            DR, DI = 184, 200
        for q in range(2):
            c = '0' if q == 0 else vr(DR, 16)
            a(f'v_mfma_f32_32x32x16_bf16 {vr(DR,16)}, {vr(AOP + 8*e + 4*q, 4)}, {vr(C1 + 4*q, 4)}, {c}')
        for q in range(2):
            c = '0' if q == 0 else vr(DI, 16)
            a(f'v_mfma_f32_32x32x16_bf16 {vr(DI,16)}, {vr(AOP + 8*e + 4*q, 4)}, {vr(NS1 + 4*q, 4)}, {c}')
    for e in range(2):
        DR, DI = (XF, XF + 16) if e == 0 else (184, 200)
        P = PK if e == 0 else 216
        for r0 in range(0, 16, 4):
            for r in range(r0, r0 + 4):
                a(f'v_mul_f32 v{1 + (r & 3)}, v{DR + r}, v{TWC + r}')
                a(f'v_mul_f32 v{232 + (r & 3)}, v{DI + r}, v{TWC + r}')
            for r in range(r0, r0 + 4):
                a(f'v_fmac_f32 v{1 + (r & 3)}, v{DI + r}, v{TWS + r}')
                a(f'v_fma_f32 v{232 + (r & 3)}, -v{DR + r}, v{TWS + r}, v{232 + (r & 3)}')
            for r in range(r0, r0 + 4):
                a(f'v_cvt_pk_bf16_f32 v{P + r}, v{1 + (r & 3)}, v{232 + (r & 3)}')
        for q in range(4):
            c = '0' if q == 0 else vr(D2 + 16 * e, 16)
            a(f'v_mfma_f32_32x32x16_bf16 {vr(D2 + 16*e, 16)}, {vr(C2 + 4*q, 4)}, {vr(P + 4*q, 4)}, {c}')
    a('s_nop 7')
    a('s_mov_b64 exec, 1')
    for e in range(2):
        a(f'v_mov_b32 v{D2 + 16*e}, v{ST + 4*e + 1}')
    a('s_mov_b64 exec, -1')
    for p in range(8):
        for e in range(2):
            a(f'v_cvt_pk_bf16_f32 v{XF + 2*p + e}, v{D2 + 16*e + 2*p}, v{D2 + 16*e + 2*p + 1}')
        kb = (p & 1) + 4 * (p >> 1)
        a(f'ds_write_b64 v{vEW}, {vr(XF + 2*p, 2)} offset:{kb * 32 * 8}')
    a('s_waitcnt lgkmcnt(0)')
    a('s_barrier')
    for t in range(2):
        a(f'ds_read_b128 {vr(RAW + 8*t, 4)}, v{vER} offset:{t * 512}')
        a(f'ds_read_b128 {vr(RAW + 8*t + 4, 4)}, v{vER} offset:{t * 512 + 16}')
    for t in range(2):
        a(f's_waitcnt lgkmcnt({2 - 2*t})')
        for m in range(4):
            a(f'v_mfma_f32_16x16x16_bf16 {vr(D2 + 16*t + 4*m, 4)}, {vr(R8, 2)}, {vr(RAW + 8*t + 2*m, 2)}, 0')
    if stamp:
        a('s_memtime s[56:57]')
    for t in range(2):
        for m in range(4):
            a(f'v_cvt_pk_bf16_f32 v{PK + 8*t + m}, v{D2 + 16*t + 4*m}, v{D2 + 16*t + 4*m + 1}')
            a(f'v_cvt_pk_bf16_f32 v{PK + 8*t + 4 + m}, v{D2 + 16*t + 4*m + 2}, v{D2 + 16*t + 4*m + 3}')
        a(f's_mov_b32 s{sT0}, {t * 4 * 8 * 16384}')
        a(f's_mov_b32 s{sT1}, {t * 4 * 8 * 16384 + 16384}')
        a(f'buffer_store_dwordx4 {vr(PK + 8*t, 4)}, v{vZ}, s[{SZ}:{SZ+3}], s{sT0} offen')
        a(f'buffer_store_dwordx4 {vr(PK + 8*t + 4, 4)}, v{vZ}, s[{SZ}:{SZ+3}], s{sT1} offen')
    if stamp:
        stamp_out(a, sW, 36)
    a.label(f'{base}_end')
    a('s_endpgm')
    prefetch_role(a, f'{base}_pf', f'{base}_end', [(KA_WR, 0, 2048 * 513 * 2), (KA_WI, 0, 2048 * 513 * 2), (KA_WG, 0, 4 << 20)])
    return (''.join(descriptor(n, 240, 72, 240) for n in names), [(n, 256 + PF_WGS * (n == names[0]), 256, P1_LDS) for n in names])


def gen_p2(a, name='p2_kernel', stamp=False):
    SZ, SR, SI = 4, 8, 12
    sW, sT0, sT1, sK1, sCG = 20, 21, 22, 23, 24
    vL = 0
    RAW, WR, WI = 8, 24, 32
    FR, FI, IR, II = 40, 44, 48, 52
    TC, TS = 56, 60
    OP = 64
    DR, DI = 80, 96
    vZ, vW = 112, 116
    T1, T2 = 120, 124
    WF = 128
    kernel_start(a, name)
    if stamp:
        a('s_memtime s[50:51]\ns_memrealtime s[52:53]')
    a(f'''
    s_load_dwordx2 s[36:37], s[0:1], {KA_WS}
    s_load_dwordx4 s[32:35], s[0:1], {KA_WR}
    s_cmp_ge_u32 s2, 256
    s_cbranch_scc1 {name}_pf
    v_lshrrev_b32 v1, 6, v0
    v_and_b32 v{vL}, 63, v0
    v_readfirstlane_b32 s{sW}, v1
    s_and_b32 s{sK1}, s2, 7
    s_lshr_b32 s{sCG}, s2, 3
    v_and_b32 v1, 7, v{vL}
    v_lshlrev_b32 v1, 5, v1
    v_bfe_u32 v2, v{vL}, 3, 1
    v_add_u32 v1, v1, v2
    v_lshrrev_b32 v2, 4, v{vL}
    v_lshl_add_u32 v1, v2, 3, v1
    v_lshlrev_b32 v1, 6, v1
    s_lshl_b32 s{sT0}, s{sW}, 4
    v_add_u32 v{vZ}, s{sT0}, v1
    v_and_b32 v1, 15, v{vL}
    v_lshl_add_u32 v1, v2, 6, v1
    v_lshl_add_u32 v1, v1, 3, s{sK1}
    v_mul_u32_u24 v3, 1026, v1
    s_lshl_b32 s{sT0}, s{sCG}, 5
    s_lshl_b32 s{sT1}, s{sW}, 3
    s_add_u32 s{sT0}, s{sT0}, s{sT1}
    v_add_u32 v{vW}, s{sT0}, v3
    s_lshl_b32 s{sT0}, s2, 14
    s_add_u32 s{sT0}, s{sT0}, {WS_Z}
    s_waitcnt lgkmcnt(0)
    ''')
    srd(a, SZ, 36, 37, f's{sT0}', 16384)
    for u in range(4):
        a(f'buffer_load_dwordx4 {vr(RAW + 4*u, 4)}, v{vZ}, s[{SZ}:{SZ+3}], 0 offen offset:{u * 128}')
    srd(a, SR, 32, 33, 0, 2048 * 513 * 2)
    srd(a, SI, 34, 35, 0, 2048 * 513 * 2)
    for r in range(4):
        a(f's_mov_b32 s{sT0}, {r * 128 * 1026}')
        a(f'buffer_load_dwordx2 {vr(WR + 2*r, 2)}, v{vW}, s[{SR}:{SR+3}], s{sT0} offen')
        a(f'buffer_load_dwordx2 {vr(WI + 2*r, 2)}, v{vW}, s[{SI}:{SI+3}], s{sT0} offen')
    a(f'''
    s_or_b32 s{sT0}, s{sCG}, s{sW}
    s_cmp_eq_u32 s{sT0}, 0
    s_cbranch_scc0 {name}_nonyq
    ''')
    for r in range(4):
        a(f's_mov_b32 s{sT0}, {r * 128 * 1026}')
        a(f'buffer_load_ushort v{DR + r}, v{vW}, s[{SR}:{SR+3}], s{sT0} offen offset:1024')
        a(f'buffer_load_ushort v{DI + r}, v{vW}, s[{SI}:{SI+3}], s{sT0} offen offset:1024')
    a('s_waitcnt vmcnt(0)')
    a(f's_mov_b32 s{sT0}, 0xffff0000')
    for r in range(4):
        a(f'v_and_or_b32 v{WR + 2*r}, v{WR + 2*r}, s{sT0}, v{DR + r}')
        a(f'v_and_or_b32 v{WI + 2*r}, v{WI + 2*r}, s{sT0}, v{DI + r}')
    a.label(f'{name}_nonyq')
    a(f'''
    v_and_b32 v1, 15, v{vL}
    v_cvt_f32_u32 v1, v1
    v_cvt_f32_u32 v2, v2
    v_mul_f32 v3, v1, v2
    v_mul_f32 v4, 0.25, v3
    ''')
    for u in range(4):
        sincos(a, 6, 7, 1, u / 16.0, 4, 5)
        a(f'v_cvt_pk_bf16_f32 v{FR + u}, v6, v7')
        a(f'v_cvt_pk_bf16_f32 v{FI + u}, -v7, v6')
        a(f'v_cvt_pk_bf16_f32 v{IR + u}, v6, -v7')
        a(f'v_cvt_pk_bf16_f32 v{II + u}, v7, v6')
    a(f'v_mul_f32 v4, {f32hex(4 / 256.0)}, v3')
    for r in range(4):
        sincos(a, TC + r, TS + r, 1, r / 256.0, 4, 5)
    if stamp:
        a('s_memtime s[54:55]')
    a('s_waitcnt vmcnt(8)')
    for j in range(4):
        for u in range(4):
            a(f'v_mov_b32 v{OP + 4*j + u}, v{RAW + 4*u + j}')

    def stage(atype, cr, ci):
        for j in range(4):
            for (d, c) in ((DR, cr), (DI, ci)):
                if atype:
                    a(f'v_mfma_f32_16x16x32_bf16 {vr(d + 4*j, 4)}, {vr(OP + 4*j, 4)}, {vr(c, 4)}, 0')
                else:
                    a(f'v_mfma_f32_16x16x32_bf16 {vr(d + 4*j, 4)}, {vr(c, 4)}, {vr(OP + 4*j, 4)}, 0')

    def cmul(j, cs, ss, conj, dst):
        for r in range(4):
            a(f'v_mul_f32 v{T1 + r}, v{DR + 4*j + r}, v{cs(r)}')
            a(f'v_mul_f32 v{T2 + r}, v{DI + 4*j + r}, v{cs(r)}')
        for r in range(4):
            n1, n2 = ('-', '') if conj else ('', '-')
            a(f'v_fma_f32 v{T1 + r}, {n1}v{DI + 4*j + r}, v{ss(r)}, v{T1 + r}')
            a(f'v_fma_f32 v{T2 + r}, {n2}v{DR + 4*j + r}, v{ss(r)}, v{T2 + r}')
        for r in range(4):
            a(f'v_cvt_pk_bf16_f32 v{dst(r)}, v{T1 + r}, v{T2 + r}')

    stage(True, FR, FI)
    for j in range(4):
        cmul(j, lambda r: TC + r, lambda r: TS + r, False, lambda r: OP + 4 * j + r)
    stage(False, FR, FI)
    a('s_waitcnt vmcnt(0)')
    scale = 2.0 / (2048 * 1024)
    a(f's_mov_b32 s{sT0}, {f32hex(scale)}')
    for j in range(4):
        for r in range(4):
            for (w, o) in ((WR, 0), (WI, 4)):
                src = w + 2 * r + (j >> 1)
                if j & 1:
                    a(f'v_and_b32 v{WF + o + r}, 0xffff0000, v{src}')
                else:
                    a(f'v_lshlrev_b32 v{WF + o + r}, 16, v{src}')
        for r in range(8):
            a(f'v_mul_f32 v{WF + r}, s{sT0}, v{WF + r}')
        cmul(j, lambda r: WF + r, lambda r: WF + 4 + r, True, lambda r: OP + 4 * j + r)
    stage(True, IR, II)
    for j in range(4):
        cmul(j, lambda r: TC + r, lambda r: TS + r, True, lambda r: OP + 4 * j + r)
    stage(False, IR, II)
    if stamp:
        a('s_memtime s[56:57]')
    for r in range(4):
        for j in range(4):
            a(f'v_cvt_pk_bf16_f32 v{RAW + 4*r + j}, v{DR + 4*j + r}, v{DI + 4*j + r}')
        a(f'buffer_store_dwordx4 {vr(RAW + 4*r, 4)}, v{vZ}, s[{SZ}:{SZ+3}], 0 offen offset:{r * 128}')
    if stamp:
        stamp_out(a, sW, 36)
    a.label(f'{name}_end')
    a('s_endpgm')
    prefetch_role(a, f'{name}_pf', f'{name}_end', [(KA_WG, 4 << 20, WB - (4 << 20)), (KA_WU, 0, WB)])
    return descriptor(name, 136, 72, 136), [(name, 256, 256, 0), (name + '+pf', 256 + PF_WGS, 256, 0)]


P3_RS = 2048 + 64
P3_LDS = 8 * P3_RS


def gen_p3(a, names=('p3a_kernel', 'p3b_kernel'), stamp=False):
    SX, SZ, S1, SL = 4, 8, 12, 16
    sW, sT0, sT1, sR0, sR1 = 20, 21, 22, 23, 30
    vL = 0
    ZR = 8
    XR = 24
    CR, CI, TWC, TWS, C2, R8 = 40, 48, 56, 72, 88, 104
    BOP = 106
    D8 = 122
    AOP = 8
    DD = [(154, 170), (186, 202)]
    PK = [218, 234]
    vZ, vX, vEW, vER, vLN = 250, 251, 252, 253, 254
    ST = 106
    base = entries(a, names, stamp)
    a(f'''
    s_cmp_ge_u32 s2, 256
    s_cbranch_scc1 {base}_pf
    v_lshrrev_b32 v1, 6, v0
    v_and_b32 v{vL}, 63, v0
    v_readfirstlane_b32 s{sW}, v1
    ''')
    srd(a, SZ, 36, 37, WS_Z, 4 << 20)
    z_voffset(a, vZ, vL, sW, 3, 4, sT0, sT1)
    for t in range(2):
        a(f's_mov_b32 s{sT0}, {t * 4 * 8 * 16384}')
        a(f's_mov_b32 s{sT1}, {t * 4 * 8 * 16384 + 16384}')
        a(f'buffer_load_dwordx4 {vr(ZR + 8*t, 4)}, v{vZ}, s[{SZ}:{SZ+3}], s{sT0} offen')
        a(f'buffer_load_dwordx4 {vr(ZR + 8*t + 4, 4)}, v{vZ}, s[{SZ}:{SZ+3}], s{sT1} offen')
    srd(a, SX, 32, 33, 0, 4 << 20)
    a(f'''
    v_and_b32 v1, 31, v{vL}
    v_lshrrev_b32 v2, 5, v{vL}
    v_lshlrev_b32 v3, 6, v1
    v_lshl_add_u32 v{vX}, v2, 5, v3
    s_lshl_b32 s{sR0}, s{sW}, 9
    s_add_u32 s{sR0}, s{sR0}, s2
    s_lshl_b32 s{sR0}, s{sR0}, 11
    s_add_u32 s{sR1}, s{sR0}, {256 * 2048}
    buffer_load_dwordx4 {vr(XR,4)}, v{vX}, s[{SX}:{SX+3}], s{sR0} offen
    buffer_load_dwordx4 {vr(XR+4,4)}, v{vX}, s[{SX}:{SX+3}], s{sR0} offen offset:16
    buffer_load_dwordx4 {vr(XR+8,4)}, v{vX}, s[{SX}:{SX+3}], s{sR1} offen
    buffer_load_dwordx4 {vr(XR+12,4)}, v{vX}, s[{SX}:{SX+3}], s{sR1} offen offset:16
    ''')
    srd(a, S1, 36, 37, WS_X1, 4 << 20)
    srd(a, SL, 36, 37, WS_LNX, 4 << 20)
    radix8_const(a, R8, vL, 3, +1)
    a(f'''
    v_lshrrev_b32 v3, 4, v{vL}
    v_mul_u32_u24 v3, {2 * P3_RS}, v3
    v_and_b32 v4, 15, v{vL}
    v_lshl_add_u32 v3, v4, 4, v3
    s_lshl_b32 s{sT0}, s{sW}, 9
    v_add_u32 v{vEW}, s{sT0}, v3
    v_lshl_add_u32 v3, v2, 7, v1
    v_lshlrev_b32 v3, 2, v3
    s_mul_i32 s{sT0}, s{sW}, {2 * P3_RS}
    v_add_u32 v{vER}, s{sT0}, v3
    s_and_b32 s{sT0}, s2, 7
    s_lshl_b32 s{sT0}, s{sT0}, 5
    s_lshr_b32 s{sT1}, s2, 3
    s_add_u32 s{sT0}, s{sT0}, s{sT1}
    s_lshr_b32 s{sT1}, s{sT0}, 2
    s_sub_u32 s{sT1}, 0, s{sT1}
    s_and_b32 s{sT1}, s{sT1}, 3
    v_lshlrev_b32 v3, 1, v2
    v_xor_b32 v3, s{sT1}, v3
    v_lshlrev_b32 v3, 4, v3
    v_lshl_add_u32 v3, v1, 14, v3
    s_lshl_b32 s{sT0}, s{sT0}, 6
    v_add_u32 v{vLN}, s{sT0}, v3
    ; n1 = pi(i) = 16*((i>>2)&1) + (i&3) + 4*(i>>3)
    v_bfe_u32 v3, v{vL}, 2, 1
    v_and_b32 v4, 3, v{vL}
    v_lshl_add_u32 v4, v3, 4, v4
    v_bfe_u32 v3, v{vL}, 3, 2
    v_lshl_add_u32 v4, v3, 2, v4
    v_cvt_f32_u32 v4, v4
    v_cvt_f32_u32 v2, v2
    v_cvt_f32_u32 v1, v1
    v_mul_f32 v3, v4, v2
    v_mul_f32 v5, {f32hex(4/32.0)}, v3
    ''')
    for q in range(2):
        for u in range(4):
            sincos(a, D8, D8 + 1, 4, (8 * q + u) / 32.0, 5, 6)
            a(f'v_cvt_pk_bf16_f32 v{CR + 4*q + u}, v{D8}, -v{D8+1}')
            a(f'v_cvt_pk_bf16_f32 v{CI + 4*q + u}, v{D8+1}, v{D8}')
    a('s_waitcnt vmcnt(4)')
    for t in range(2):
        for m in range(4):
            a(f'v_mov_b32 v{BOP + 8*t + 2*m}, v{ZR + 8*t + m}')
            a(f'v_mov_b32 v{BOP + 8*t + 2*m + 1}, v{ZR + 8*t + 4 + m}')
    for t in range(2):
        for m in range(4):
            a(f'v_mfma_f32_16x16x16_bf16 {vr(D8 + 16*t + 4*m, 4)}, {vr(R8, 2)}, {vr(BOP + 8*t + 2*m, 2)}, 0')
    a(f'v_mul_f32 v5, {f32hex(4/1024.0)}, v3')
    for r in range(8):
        sincos(a, TWC + r, TWS + r, 4, ((r & 3) + 8 * (r >> 2)) / 1024.0, 5, 6)
    for t in range(2):
        for m in range(4):
            a(f'v_cvt_pk_bf16_f32 v{ZR + 8*t + m}, v{D8 + 16*t + 4*m}, v{D8 + 16*t + 4*m + 1}')
            a(f'v_cvt_pk_bf16_f32 v{ZR + 8*t + 4 + m}, v{D8 + 16*t + 4*m + 2}, v{D8 + 16*t + 4*m + 3}')
        a(f'ds_write_b128 v{vEW}, {vr(ZR + 8*t, 4)} offset:{t * 256}')
        a(f'ds_write_b128 v{vEW}, {vr(ZR + 8*t + 4, 4)} offset:{t * 256 + P3_RS}')
    for r in range(8, 16):
        sincos(a, TWC + r, TWS + r, 4, ((r & 3) + 8 * (r >> 2)) / 1024.0, 5, 6)
    a('s_waitcnt lgkmcnt(0)')
    a('s_barrier')
    for e in range(2):
        for q in range(2):
            for u in (0, 2):
                o = (e * P3_RS) // 4
                a(f'v_add_u32 v7, {e * P3_RS + (8*q) * 128}, v{vER}')
                a(f'ds_read2_b32 {vr(AOP + 8*e + 4*q + u, 2)}, v7 offset0:{32*u} offset1:{32*(u+1)}')
    a(f'v_mul_f32 v3, v1, v2')
    a(f'v_mul_f32 v5, {f32hex(4/32.0)}, v3')
    for q in range(4):
        for u in range(4):
            sincos(a, D8, D8 + 1, 1, (8 * q + u) / 32.0, 5, 6)
            a(f'v_cvt_pk_bf16_f32 v{C2 + 4*q + u}, v{D8}, -v{D8+1}')
    if stamp:
        a('s_memtime s[54:55]')
    a('s_waitcnt lgkmcnt(0)')
    for e in range(2):
        a(f'v_readlane_b32 s{24 + e}, v{AOP + 8*e}, 0')
        a(f'v_writelane_b32 v{AOP + 8*e}, 0, 0')
    for e in range(2):
        DR, DI = DD[e]
        for (d, c) in ((DR, CR), (DI, CI)):
            for q in range(2):
                cc = '0' if q == 0 else vr(d, 16)
                a(f'v_mfma_f32_32x32x16_bf16 {vr(d,16)}, {vr(AOP + 8*e + 4*q, 4)}, {vr(c + 4*q, 4)}, {cc}')
    for e in range(2):
        a(f's_lshl_b32 s{24 + e}, s{24 + e}, 16')
        a(f'v_mul_f32 v1, 0.5, s{24+e}'.replace('v_mul_f32', 'v_mul_f32_e64'))
        for r in range(16):
            if r & 1:
                a(f'v_sub_f32 v{D8 + 16*e + r}, 0, v1')
            else:
                a(f'v_mov_b32 v{D8 + 16*e + r}, v1')
    for e in range(2):
        DR, DI = DD[e]
        P = PK[e]
        for r0 in range(0, 16, 4):
            for r in range(r0, r0 + 4):
                a(f'v_mul_f32 v{1 + (r & 3)}, v{DR + r}, v{TWC + r}')
                a(f'v_mul_f32 v{114 + (r & 3)}, v{DI + r}, v{TWC + r}')
            for r in range(r0, r0 + 4):
                a(f'v_fma_f32 v{1 + (r & 3)}, -v{DI + r}, v{TWS + r}, v{1 + (r & 3)}')
                a(f'v_fmac_f32 v{114 + (r & 3)}, v{DR + r}, v{TWS + r}')
            for r in range(r0, r0 + 4):
                a(f'v_cvt_pk_bf16_f32 v{P + r}, v{1 + (r & 3)}, v{114 + (r & 3)}')
        for q in range(4):
            a(f'v_mfma_f32_32x32x16_bf16 {vr(D8 + 16*e, 16)}, {vr(P + 4*q, 4)}, {vr(C2 + 4*q, 4)}, {vr(D8 + 16*e, 16)}')
    if stamp:
        a('s_memtime s[56:57]')
    a('s_waitcnt vmcnt(0)')
    for e in range(2):
        Y, XF = D8 + 16 * e, DD[e][0]
        for c in range(8):
            a(f'v_cvt_pk_bf16_f32 v{PK[e] + c}, v{Y + 2*c}, v{Y + 2*c + 1}')
        for c in range(8):
            a(f'v_lshlrev_b32 v{Y + 2*c}, 16, v{PK[e] + c}')
            a(f'v_and_b32 v{Y + 2*c + 1}, 0xffff0000, v{PK[e] + c}')
            a(f'v_lshlrev_b32 v{XF + 2*c}, 16, v{XR + 8*e + c}')
            a(f'v_and_b32 v{XF + 2*c + 1}, 0xffff0000, v{XR + 8*e + c}')
        for c in range(8):
            a(f'v_pk_add_f32 {vr(XF + 2*c, 2)}, {vr(XF + 2*c, 2)}, {vr(Y + 2*c, 2)}')
        for c in range(8):
            a(f'v_cvt_pk_bf16_f32 v{XR + 8*e + c}, v{XF + 2*c}, v{XF + 2*c + 1}')
        so = (sR0, sR1)[e]
        a(f'buffer_store_dwordx4 {vr(XR + 8*e, 4)}, v{vX}, s[{S1}:{S1+3}], s{so} offen')
        a(f'buffer_store_dwordx4 {vr(XR + 8*e + 4, 4)}, v{vX}, s[{S1}:{S1+3}], s{so} offen offset:16')
        for c in range(8):
            a(f'v_lshlrev_b32 v{XF + 2*c}, 16, v{XR + 8*e + c}')
            a(f'v_and_b32 v{XF + 2*c + 1}, 0xffff0000, v{XR + 8*e + c}')
        ln_stats(a, XF, ST + 4 * e, None)
        a(f'v_add_f32 v{ST + 4*e}, v{ST + 4*e}, v{ST + 4*e + 1}')
    wave_reduce(a, [ST, ST + 2, ST + 4, ST + 6], [24, 26, 27, 29])
    a('s_mov_b32 s25, 0')
    a('s_mov_b32 s28, 0')
    for e in range(2):
        ln_finish(a, 24 + 3 * e, 25 + 3 * e, 26 + 3 * e, ST + 4 * e)
    a(f'v_xor_b32 v1, 16, v{vLN}')
    for e in range(2):
        R, XF = ST + 4 * e, DD[e][0]
        for c in range(8):
            a(f'v_pk_fma_f32 {vr(XF + 2*c, 2)}, {vr(XF + 2*c, 2)}, {vr(R,2)}, {vr(R+2,2)} op_sel_hi:[1,0,0]')
        order = [0, 1, 4, 5, 2, 3, 6, 7]
        for i, c in enumerate(order):
            a(f'v_cvt_pk_bf16_f32 v{PK[e] + i}, v{XF + 2*c}, v{XF + 2*c + 1}')
        a(f's_lshl_b32 s{sT0}, s{sW}, 20')
        a(f's_add_u32 s{sT0}, s{sT0}, {e << 19}')
        a(f'buffer_store_dwordx4 {vr(PK[e], 4)}, v{vLN}, s[{SL}:{SL+3}], s{sT0} offen')
        a(f'buffer_store_dwordx4 {vr(PK[e] + 4, 4)}, v1, s[{SL}:{SL+3}], s{sT0} offen')
    if stamp:
        stamp_out(a, sW, 36)
    a.label(f'{base}_end')
    a('s_endpgm')
    prefetch_role(a, f'{base}_pf', f'{base}_end', [(KA_WD, 0, WB)])
    return (''.join(descriptor(n, 256, 72, 256) for n in names), [(n, 256 + PF_WGS * (n == names[0]), 256, P3_LDS) for n in names])


def gen_fin(a, name='fin_kernel', stamp=False):
    kernel_start(a, name)
    if stamp:
        a('s_memtime s[50:51]\ns_memrealtime s[52:53]\ns_memtime s[54:55]\ns_memtime s[56:57]')
    a(f'''
    s_load_dwordx2 s[36:37], s[0:1], {KA_WS}
    s_load_dwordx2 s[32:33], s[0:1], {KA_OUT}
    s_cmp_ge_u32 s2, 256
    s_cbranch_scc1 {name}_end
    v_lshrrev_b32 v1, 6, v0
    v_readfirstlane_b32 s20, v1
    v_lshlrev_b32 v1, 4, v0
    s_lshl_b32 s21, s2, 14
    s_add_u32 s22, s21, {4 << 20}
    s_waitcnt lgkmcnt(0)
    ''')
    srd(a, 8, 36, 37, WS_P, 8 << 20)
    srd(a, 12, 32, 33, 0, 4 << 20)
    a('v_add_u32 v2, 8192, v1')
    for i in range(2):
        a(f'buffer_load_dwordx4 {vr(4 + 8*i, 4)}, v{1+i}, s[8:11], s21 offen')
        a(f'buffer_load_dwordx4 {vr(8 + 8*i, 4)}, v{1+i}, s[8:11], s22 offen')
    for i in range(2):
        a(f's_waitcnt vmcnt({2 - i})')
        for c in range(4):
            for k in range(2):
                a(f'v_lshlrev_b32 v{28 + 2*k}, 16, v{4 + 8*i + 4*k + c}')
                a(f'v_and_b32 v{29 + 2*k}, 0xffff0000, v{4 + 8*i + 4*k + c}')
            a('v_pk_add_f32 v[28:29], v[28:29], v[30:31]')
            a(f'v_cvt_pk_bf16_f32 v{36 + 4*i + c}, v28, v29')
        a(f'buffer_store_dwordx4 {vr(36 + 4*i, 4)}, v{1+i}, s[12:15], s21 offen sc1')
    if stamp:
        stamp_out(a, 20, 36)
    a.label(f'{name}_end')
    a('s_endpgm')
    return descriptor(name, 48, 72, 48), (name, 256, 512, 0)
```

```python
from gen_common import *
from gen_p import sincos, wave_reduce, radix8_const, ln_stats, ln_finish, EPS, WB

WS_WT = 12 << 20
PF_WGS = 256
SC1 = ' sc1'
PF2, PF3 = 2 << 20, 3 << 20


def fma_sincos(a, dc, ds, fv, fk, base, tmp):
    a(f'v_fma_f32 v{tmp}, v{fv}, v{fk}, v{base}')
    a(f'v_cos_f32 v{dc}, v{tmp}')
    a(f'v_sin_f32 v{ds}, v{tmp}')


def entries2(a, names, stamp):
    base = names[0][:-8]
    for li, name in enumerate(names):
        kernel_start(a, name)
        if stamp:
            a('s_memtime s[50:51]\ns_memrealtime s[52:53]')
        a(f's_load_dwordx2 s[36:37], s[0:1], {KA_WS}')
        a(f's_load_dwordx2 s[32:33], s[0:1], {KA_X}')
        a(f's_mov_b32 s38, {li}')
        if li == 0:
            a(f's_branch {base}_body')
    a.label(f'{base}_body')
    return base


def stream_loads(a, items, vaddr, r0, wgs, per_inst):
    r = r0
    for (lo, st, n) in items:
        srd(a, 4, lo, lo + 1, st, n)
        chunk = wgs * per_inst
        for c in range(-(-n // chunk)):
            a(f's_mov_b32 s21, {c * chunk}')
            a(f'buffer_load_dwordx4 {vr(r, 4)}, v{vaddr}, s[4:7], s21 offen')
            r += 4


def prefetch_role(a, label, endlabel, items):
    a.label(label)
    a(f's_cmp_ge_u32 s2, {256 + PF_WGS}')
    a(f's_cbranch_scc1 {endlabel}')
    for i, (ka, st, n) in enumerate(items):
        a(f's_load_dwordx2 s[{40 + 2*i}:{41 + 2*i}], s[0:1], {ka}')
    a('s_sub_u32 s20, s2, 256')
    a('s_lshl_b32 s20, s20, 13')
    a('v_lshlrev_b32 v1, 4, v0')
    a('v_add_u32 v1, s20, v1')
    a('s_waitcnt lgkmcnt(0)')
    stream_loads(a, [(40 + 2 * i, st, n) for i, (ka, st, n) in enumerate(items)], 1, 4, PF_WGS, 8192)
    a(f's_branch {endlabel}')


def zoff(a, dst, vL, sW, t0, t1, sT0, sT1):
    a(f'''
    v_bfe_u32 v{t0}, v{vL}, 2, 2
    v_lshrrev_b32 v{t1}, 4, v{vL}
    v_lshlrev_b32 v{t0}, 17, v{t0}
    v_lshl_add_u32 v{t0}, v{t1}, 15, v{t0}
    v_and_b32 v{t1}, 3, v{vL}
    v_lshl_add_u32 v{dst}, v{t1}, 4, v{t0}
    s_and_b32 s{sT0}, s2, 7
    s_lshl_b32 s{sT0}, s{sT0}, 5
    s_lshr_b32 s{sT1}, s2, 3
    s_add_u32 s{sT0}, s{sT0}, s{sT1}
    s_lshl_b32 s{sT0}, s{sT0}, 6
    s_lshl_b32 s{sT1}, s{sW}, 19
    s_add_u32 s{sT0}, s{sT0}, s{sT1}
    v_add_u32 v{dst}, s{sT0}, v{dst}
    ''')


def twiddle(a, DR, DI, TW, P, conj, T1, T2, hook=None):
    for r0 in range(0, 16, 4):
        if hook:
            hook(r0)
        for r in range(r0, r0 + 4):
            a(f'v_mul_f32 v{T1 + (r & 3)}, v{DR + r}, v{TW + 2*r}')
            a(f'v_mul_f32 v{T2 + (r & 3)}, v{DI + r}, v{TW + 2*r}')
        n1, n2 = ('-', '') if conj else ('', '-')
        for r in range(r0, r0 + 4):
            a(f'v_fma_f32 v{T1 + (r & 3)}, {n1}v{DI + r}, v{TW + 2*r + 1}, v{T1 + (r & 3)}')
            a(f'v_fma_f32 v{T2 + (r & 3)}, {n2}v{DR + r}, v{TW + 2*r + 1}, v{T2 + (r & 3)}')
        for r in range(r0, r0 + 4):
            a(f'v_cvt_pk_bf16_f32 v{P + r}, v{T1 + (r & 3)}, v{T2 + (r & 3)}')


P1_S, P1_E, P1_ES = 16384, 32768, 4096 + 128
P1_LDS = P1_E + 4 * P1_ES


def gen_p1(a, names=('p1a_kernel', 'p1b_kernel'), stamp=False):
    SX, SZ, SP, S2 = 4, 8, 12, 16
    sW, sT0, sT1, sRow = 20, 21, 22, 23
    vL = 0
    RAW, PA, PB = 8, 16, 24
    CT = 32
    C1, NS1, C2, TW = CT, CT + 8, CT, CT + 16
    R8, ST = 80, 82
    XF = 86
    vZ, vLW, vLR, vEW, vER, vTB = 118, 119, 120, 121, 122, 123
    K = XF + 16
    base = entries2(a, names, stamp)
    a(f'''
    s_cmp_ge_u32 s2, 256
    s_cbranch_scc1 {base}_pf
    v_lshrrev_b32 v1, 6, v0
    v_and_b32 v{vL}, 63, v0
    v_readfirstlane_b32 s{sW}, v1
    v_lshlrev_b32 v{vTB}, 4, v{vL}
    ; k1 = 16(w>>2) + 2(w&3), k2 = 2(w&1) + 8(w>>1)
    v_lshrrev_b32 v2, 2, v1
    v_and_b32 v3, 3, v1
    v_lshlrev_b32 v3, 1, v3
    v_lshl_add_u32 v2, v2, 4, v3
    v_lshrrev_b32 v4, 5, v{vL}
    v_lshl_add_u32 v2, v4, 3, v2
    v_cvt_f32_u32 v2, v2
    v_lshrrev_b32 v3, 1, v1
    v_and_b32 v5, 1, v1
    v_lshlrev_b32 v5, 1, v5
    v_lshl_add_u32 v3, v3, 3, v5
    v_lshl_add_u32 v3, v4, 2, v3
    v_cvt_f32_u32 v3, v3
    v_and_b32 v4, 31, v{vL}
    v_cvt_f32_u32 v4, v4
    v_mul_f32 v5, {f32hex(1/32.0)}, v4
    v_mul_f32 v6, v5, v2
    v_add_f32 v7, v6, v5
    v_cos_f32 v{XF}, v6
    v_cos_f32 v{XF+1}, v7
    v_sin_f32 v{XF+2}, v6
    v_sin_f32 v{XF+3}, v7
    v_mul_f32 v5, {f32hex(1/1024.0)}, v4
    v_mul_f32 v6, v5, v3
    v_add_f32 v7, v6, v5
    v_cos_f32 v{K+4}, v6
    v_sin_f32 v{K+5}, v6
    v_cos_f32 v{K+6}, v7
    v_sin_f32 v{K+7}, v7
    v_cvt_pk_bf16_f32 v{K}, v{XF}, v{XF+1}
    v_cvt_pk_bf16_f32 v{K+1}, -v{XF+2}, -v{XF+3}
    v_bfe_u32 v4, v{vL}, 1, 4
    v_cvt_f32_u32 v4, v4
    v_mul_f32 v5, {f32hex(1/32.0)}, v4
    v_and_b32 v6, 1, v{vL}
    v_cvt_f32_u32 v6, v6
    v_mul_f32 v6, 0.25, v6
    v_fma_f32 v6, v5, v3, v6
    v_add_f32 v7, v6, v5
    v_cos_f32 v{XF}, v6
    v_sin_f32 v{XF+1}, v6
    v_cos_f32 v{XF+2}, v7
    v_sin_f32 v{XF+3}, v7
    s_lshl_b32 s{sRow}, s{sW}, 8
    s_add_u32 s{sRow}, s{sRow}, s2
    s_lshl_b32 s{sRow}, s{sRow}, 11
    v_cvt_pk_bf16_f32 v{K+2}, v{XF}, v{XF+1}
    v_cvt_pk_bf16_f32 v{K+3}, v{XF+2}, v{XF+3}
    s_waitcnt lgkmcnt(0)
    s_add_u32 s40, s36, {hex(WS_P)}
    s_addc_u32 s41, s37, 0
    s_cmp_eq_u32 s38, 0
    s_cselect_b32 s40, s32, s40
    s_cselect_b32 s41, s33, s41
    ''')
    srd(a, SX, 40, 41, 0, 4 << 20)
    a(f'''
    buffer_load_dwordx4 {vr(RAW,4)}, v{vTB}, s[{SX}:{SX+3}], s{sRow} offen
    buffer_load_dwordx4 {vr(RAW+4,4)}, v{vTB}, s[{SX}:{SX+3}], s{sRow} offen offset:1024
    s_cmp_eq_u32 s38, 0
    s_cbranch_scc1 {base}_nopart
    ''')
    srd(a, SP, 36, 37, WS_P + (4 << 20), 4 << 20)
    a(f'''
    buffer_load_dwordx4 {vr(PA,4)}, v{vTB}, s[{SP}:{SP+3}], s{sRow} offen
    buffer_load_dwordx4 {vr(PA+4,4)}, v{vTB}, s[{SP}:{SP+3}], s{sRow} offen offset:1024
    ''')
    srd(a, S2, 36, 37, WS_X2, 4 << 20)
    a.label(f'{base}_nopart')
    a(f'''
    s_lshr_b32 s{sT0}, s{sW}, 2
    s_lshl_b32 s{sT0}, s{sT0}, 10
    s_and_b32 s{sT1}, s{sW}, 3
    s_lshl_b32 s{sT1}, s{sT1}, 2
    s_add_u32 s{sT0}, s{sT0}, s{sT1}
    v_add_u32 v1, s{sT0}, v{vTB}
    ds_write_b32 v1, v{K}
    ds_write_b32 v1, v{K+1} offset:2048
    s_lshr_b32 s{sT0}, s{sW}, 1
    s_lshl_b32 s{sT0}, s{sT0}, 10
    s_and_b32 s{sT1}, s{sW}, 1
    s_lshl_b32 s{sT1}, s{sT1}, 3
    s_add_u32 s{sT0}, s{sT0}, s{sT1}
    v_add_u32 v1, s{sT0}, v{vTB}
    ds_write_b64 v1, {vr(K+2,2)} offset:4096
    s_lshl_b32 s{sT0}, s{sW}, 10
    v_add_u32 v1, s{sT0}, v{vTB}
    ds_write_b128 v1, {vr(K+4,4)} offset:8192
    ''')
    srd(a, SZ, 36, 37, WS_Z, 4 << 20)
    a(f'''
    s_lshl_b32 s{sT0}, s{sW}, 11
    s_add_u32 s{sT0}, s{sT0}, {P1_S}
    v_add_u32 v{vLW}, s{sT0}, v{vTB}
    v_lshrrev_b32 v3, 5, v{vL}
    v_bfe_u32 v4, v{vL}, 2, 2
    v_lshl_add_u32 v3, v3, 3, v4
    v_lshlrev_b32 v3, 6, v3
    v_bfe_u32 v4, v{vL}, 4, 1
    v_lshl_add_u32 v3, v4, 5, v3
    v_and_b32 v4, 3, v{vL}
    v_lshl_add_u32 v3, v4, 3, v3
    v_add_u32 v{vLR}, s{sT0}, v3
    s_waitcnt lgkmcnt(0)
    s_barrier
    ''')
    for g in range(4):
        a(f'ds_read_b128 {vr(CT + 4*g, 4)}, v{vTB} offset:{g * 1024}')
    for g in range(8):
        a(f'ds_read_b128 {vr(TW + 4*g, 4)}, v{vTB} offset:{(8 + g) * 1024}')
    a(f'''
    s_lshr_b32 s{sT0}, s{sW}, 1
    s_mul_i32 s{sT0}, s{sT0}, {P1_ES}
    s_and_b32 s{sT1}, s{sW}, 1
    s_lshl_b32 s{sT1}, s{sT1}, 2
    s_add_u32 s{sT0}, s{sT0}, s{sT1}
    s_add_u32 s{sT0}, s{sT0}, {P1_E}
    v_and_b32 v3, 31, v{vL}
    v_lshrrev_b32 v4, 5, v{vL}
    v_lshl_add_u32 v3, v4, 6, v3
    v_lshlrev_b32 v3, 3, v3
    v_add_u32 v{vEW}, s{sT0}, v3
    v_lshrrev_b32 v3, 4, v{vL}
    v_mul_u32_u24 v3, {P1_ES}, v3
    v_and_b32 v4, 15, v{vL}
    v_lshl_add_u32 v3, v4, 5, v3
    s_lshl_b32 s{sT0}, s{sW}, 9
    s_add_u32 s{sT0}, s{sT0}, {P1_E}
    v_add_u32 v{vER}, s{sT0}, v3
    ''')
    zoff(a, vZ, vL, sW, 3, 4, sT0, sT1)
    radix8_const(a, R8, vL, 1, -1)
    if stamp:
        a('s_memtime s[54:55]')
    a(f'''
    s_waitcnt vmcnt(0)
    s_cmp_eq_u32 s38, 0
    s_cbranch_scc1 {base}_ln
    ''')
    for c in range(8):
        d = XF + 4 * (c & 1)
        for k, sreg in enumerate((RAW + c, PA + c)):
            a(f'v_lshlrev_b32 v{d + 2*k}, 16, v{sreg}')
            a(f'v_and_b32 v{d + 2*k + 1}, 0xffff0000, v{sreg}')
        a(f'v_pk_add_f32 {vr(d, 2)}, {vr(d, 2)}, {vr(d + 2, 2)}')
        a(f'v_cvt_pk_bf16_f32 v{RAW + c}, v{d}, v{d + 1}')
    a(f'buffer_store_dwordx4 {vr(RAW, 4)}, v{vTB}, s[{S2}:{S2+3}], s{sRow} offen{SC1}')
    a(f'buffer_store_dwordx4 {vr(RAW + 4, 4)}, v{vTB}, s[{S2}:{S2+3}], s{sRow} offen offset:1024{SC1}')
    a.label(f'{base}_ln')
    for c in range(8):
        a(f'v_lshlrev_b32 v{XF + 2*c}, 16, v{RAW + c}')
        a(f'v_and_b32 v{XF + 2*c + 1}, 0xffff0000, v{RAW + c}')
    ln_stats(a, XF, ST, None)
    wave_reduce(a, [ST, ST + 1, ST + 2], [24, 25, 26])
    ln_finish(a, 24, 25, 26, ST)
    for c in range(8):
        a(f'v_pk_fma_f32 {vr(XF + 2*c, 2)}, {vr(XF + 2*c, 2)}, {vr(ST,2)}, {vr(ST+2,2)} op_sel_hi:[1,0,0]')
    for c in range(8):
        a(f'v_cvt_pk_bf16_f32 v{PA + c}, v{XF + 2*c}, v{XF + 2*c + 1}')
    a(f'''
    ds_write_b128 v{vLW}, {vr(PA, 4)}
    ds_write_b128 v{vLW}, {vr(PA + 4, 4)} offset:1024
    v_mov_b32 v{ST+1}, s24
    v_subrev_f32 v{ST+1}, s25, v{ST+1}
    v_mul_f32 v{ST+1}, v{ST+1}, v{ST}
    s_waitcnt lgkmcnt(0)
    ''')
    for q in range(2):
        for jj in range(2):
            a(f'ds_read_b64_tr_b16 {vr(PB + 4*q + 2*jj, 2)}, v{vLR} offset:{(16*q + 4*jj) * 64}')
    DR, DI = XF, XF + 16
    for q in range(2):
        a(f's_waitcnt lgkmcnt({2 - 2*q})')
        for (d, c) in ((DR, C1), (DI, NS1)):
            cc = '0' if q == 0 else vr(d, 16)
            a(f'v_mfma_f32_32x32x16_bf16 {vr(d,16)}, {vr(PB + 4*q, 4)}, {vr(c + 4*q, 4)}, {cc}')
    P = 8
    for g in range(4):
        a(f'ds_read_b128 {vr(C2 + 4*g, 4)}, v{vTB} offset:{(4 + g) * 1024}')
    twiddle(a, DR, DI, TW, P, False, 1, PB)
    a('s_waitcnt lgkmcnt(0)')
    D2 = XF
    for q in range(4):
        cc = '0' if q == 0 else vr(D2, 16)
        a(f'v_mfma_f32_32x32x16_bf16 {vr(D2, 16)}, {vr(C2 + 4*q, 4)}, {vr(P + 4*q, 4)}, {cc}')
    a('s_nop 7')
    a('s_mov_b64 exec, 1')
    a(f'v_mov_b32 v{D2}, v{ST + 1}')
    a('s_mov_b64 exec, -1')
    for p in range(8):
        a(f'v_cvt_pk_bf16_f32 v{PB + p}, v{D2 + 2*p}, v{D2 + 2*p + 1}')
        kb = (p & 1) + 4 * (p >> 1)
        a(f'ds_write_b32 v{vEW}, v{PB + p} offset:{kb * 32 * 8}')
    a(f'''
    s_waitcnt lgkmcnt(0)
    s_barrier
    ds_read_b128 {vr(PA, 4)}, v{vER}
    ds_read_b128 {vr(PA + 4, 4)}, v{vER} offset:16
    s_mov_b32 s{sT1}, 16384
    ''')
    for m in range(4):
        if m % 2 == 0:
            a(f's_waitcnt lgkmcnt({1 - m // 2})')
        a(f'v_mfma_f32_16x16x16_bf16 {vr(XF + 16 + 4*m, 4)}, {vr(R8, 2)}, {vr(PA + 2*m, 2)}, 0')
    if stamp:
        a('s_memtime s[56:57]')
    for m in range(4):
        a(f'v_cvt_pk_bf16_f32 v{PB + m}, v{XF + 16 + 4*m}, v{XF + 16 + 4*m + 1}')
        a(f'v_cvt_pk_bf16_f32 v{PB + 4 + m}, v{XF + 16 + 4*m + 2}, v{XF + 16 + 4*m + 3}')
    a(f'buffer_store_dwordx4 {vr(PB, 4)}, v{vZ}, s[{SZ}:{SZ+3}], 0 offen{SC1}')
    a(f'buffer_store_dwordx4 {vr(PB + 4, 4)}, v{vZ}, s[{SZ}:{SZ+3}], s{sT1} offen{SC1}')
    if stamp:
        stamp_out(a, sW, 36)
    a.label(f'{base}_end')
    a('s_endpgm')
    a.label(f'{base}_pf')
    a(f'''
    s_cmp_ge_u32 s2, {256 + PF_WGS}
    s_cbranch_scc1 {base}_end
    s_cmp_eq_u32 s38, 0
    s_cbranch_scc0 {base}_end
    s_load_dwordx4 s[40:43], s[0:1], {KA_WR}
    v_lshrrev_b32 v1, 6, v0
    v_and_b32 v{vL}, 63, v0
    v_readfirstlane_b32 s{sW}, v1
    s_sub_u32 s24, s2, 256
    s_cmp_ge_u32 s{sW}, 4
    s_cbranch_scc1 {base}_end
    s_and_b32 s25, s24, 7
    s_lshr_b32 s26, s24, 3
    v_lshrrev_b32 v2, 4, v{vL}
    v_and_b32 v1, 15, v{vL}
    v_lshl_add_u32 v1, v2, 6, v1
    v_lshl_add_u32 v1, v1, 3, s25
    v_mul_u32_u24 v3, 1026, v1
    s_lshl_b32 s{sT0}, s26, 5
    s_lshl_b32 s{sT1}, s{sW}, 3
    s_add_u32 s{sT0}, s{sT0}, s{sT1}
    v_add_u32 v3, s{sT0}, v3
    s_waitcnt lgkmcnt(0)
    ''')
    srd(a, 4, 40, 41, 0, 2048 * 513 * 2)
    srd(a, 8, 42, 43, 0, 2048 * 513 * 2)
    for r in range(4):
        a(f's_mov_b32 s{sT0}, {r * 128 * 1026}')
        a(f'buffer_load_dwordx2 {vr(8 + 2*r, 2)}, v3, s[4:7], s{sT0} offen')
        a(f'buffer_load_dwordx2 {vr(16 + 2*r, 2)}, v3, s[8:11], s{sT0} offen')
    a(f'''
    s_or_b32 s{sT0}, s26, s{sW}
    s_cmp_eq_u32 s{sT0}, 0
    s_cbranch_scc0 {base}_nonyq
    ''')
    for r in range(4):
        a(f's_mov_b32 s{sT0}, {r * 128 * 1026}')
        a(f'buffer_load_ushort v{24 + r}, v3, s[4:7], s{sT0} offen offset:1024')
        a(f'buffer_load_ushort v{28 + r}, v3, s[8:11], s{sT0} offen offset:1024')
    a('s_waitcnt vmcnt(0)')
    a(f's_mov_b32 s{sT0}, 0xffff0000')
    for r in range(4):
        a(f'v_and_or_b32 v{8 + 2*r}, v{8 + 2*r}, s{sT0}, v{24 + r}')
        a(f'v_and_or_b32 v{16 + 2*r}, v{16 + 2*r}, s{sT0}, v{28 + r}')
    a.label(f'{base}_nonyq')
    a(f'''
    s_lshl_b32 s{sT0}, s24, 14
    s_lshl_b32 s{sT1}, s{sW}, 12
    s_add_u32 s{sT0}, s{sT0}, s{sT1}
    s_add_u32 s{sT0}, s{sT0}, {hex(WS_WT)}
    ''')
    srd(a, 12, 36, 37, f's{sT0}', 4096)
    a(f'''
    s_mov_b32 s27, 0x05040100
    s_mov_b32 s28, 0x07060302
    v_lshlrev_b32 v1, 4, v{vL}
    s_waitcnt vmcnt(0)
    ''')
    for j in range(4):
        for r in range(4):
            a(f'v_perm_b32 v{32 + 4*j + r}, v{16 + 2*r + (j >> 1)}, v{8 + 2*r + (j >> 1)}, s{27 + (j & 1)}')
        a(f'buffer_store_dwordx4 {vr(32 + 4*j, 4)}, v1, s[12:15], 0 offen offset:{j * 1024}{SC1}')
    a('s_endpgm')
    return (''.join(descriptor(n, 124, 72, 124) for n in names), [(n, 256 + PF_WGS * (n == names[0]), 512, P1_LDS) for n in names])


def gen_p2(a, name='p2_kernel', stamp=False):
    SZ, SW = 4, 8
    sW, sT0, sT1 = 20, 21, 22
    vL = 0
    RAW, WT = 8, 16
    FR, FI, IR, II = 24, 28, 32, 36
    TC, TS = 40, 44
    OP, DR, DI = 48, 56, 64
    T1, T2, WF = 72, 76, 80
    vG, vR, vLin = 88, 89, 90
    kernel_start(a, name)
    if stamp:
        a('s_memtime s[50:51]\ns_memrealtime s[52:53]')
    a(f'''
    s_load_dwordx2 s[36:37], s[0:1], {KA_WS}
    s_cmp_ge_u32 s2, 256
    s_cbranch_scc1 {name}_pf
    v_lshrrev_b32 v1, 6, v0
    v_and_b32 v{vL}, 63, v0
    v_readfirstlane_b32 s{sW}, v1
    v_lshrrev_b32 v2, 3, v{vL}
    v_lshlrev_b32 v2, 5, v2
    v_bfe_u32 v3, v{vL}, 2, 1
    v_add_u32 v2, v2, v3
    v_lshl_add_u32 v2, v1, 2, v2
    v_lshlrev_b32 v2, 6, v2
    v_lshrrev_b32 v3, 4, v{vL}
    v_and_b32 v4, 3, v{vL}
    v_xor_b32 v4, v4, v3
    v_lshl_add_u32 v{vG}, v4, 4, v2
    v_lshlrev_b32 v{vLin}, 4, v0
    v_and_b32 v2, 7, v{vL}
    v_bfe_u32 v4, v{vL}, 3, 1
    v_lshl_add_u32 v2, v2, 1, v4
    v_lshrrev_b32 v4, 2, v2
    v_lshrrev_b32 v5, 1, v1
    v_xor_b32 v4, v4, v5
    v_lshlrev_b32 v4, 4, v4
    v_lshl_add_u32 v4, v2, 6, v4
    v_lshl_add_u32 v4, v3, 12, v4
    v_and_b32 v5, 1, v1
    v_lshl_add_u32 v{vR}, v5, 3, v4
    s_lshl_b32 s{sT1}, s{sW}, 11
    s_mov_b32 m0, s{sT1}
    s_lshl_b32 s{sT0}, s2, 14
    s_add_u32 s24, s{sT0}, {hex(WS_WT)}
    ; constants
    v_and_b32 v1, 15, v{vL}
    v_cvt_f32_u32 v1, v1
    v_cvt_f32_u32 v2, v3
    v_mul_f32 v3, v1, v2
    v_mul_f32 v4, 0.25, v3
    ''')
    for u in range(2):
        sincos(a, 6, 7, 1, u / 16.0, 4, 5)
        a(f'v_cvt_pk_bf16_f32 v{FR + u}, v6, v7')
        a(f'v_cvt_pk_bf16_f32 v{FI + u}, -v7, v6')
        a(f'v_cvt_pk_bf16_f32 v{IR + u}, v6, -v7')
        a(f'v_cvt_pk_bf16_f32 v{II + u}, v7, v6')
    a('s_waitcnt lgkmcnt(0)')
    srd(a, SZ, 36, 37, f's{sT0}', 16384)
    a(f'''
    buffer_load_dwordx4 v{vG}, s[{SZ}:{SZ+3}], 0 offen lds
    s_add_u32 m0, s{sT1}, {1024 - 128}
    ''')
    srd(a, SW, 36, 37, 's24', 16384)
    a(f'''
    buffer_load_dwordx4 v{vG}, s[{SZ}:{SZ+3}], 0 offen offset:128 lds
    v_lshlrev_b32 v8, 4, v{vL}
    v_add_u32 v8, s{sT1}, v8
    buffer_load_dwordx4 {vr(WT + 4, 4)}, v8, s[{SW}:{SW+3}], 0 offen offset:1024
    buffer_load_dwordx4 {vr(WT, 4)}, v8, s[{SW}:{SW+3}], 0 offen
    v_mov_b32 v{vLin}, v8
    ''')
    for u in range(2, 4):
        sincos(a, 6, 7, 1, u / 16.0, 4, 5)
        a(f'v_cvt_pk_bf16_f32 v{FR + u}, v6, v7')
        a(f'v_cvt_pk_bf16_f32 v{FI + u}, -v7, v6')
        a(f'v_cvt_pk_bf16_f32 v{IR + u}, v6, -v7')
        a(f'v_cvt_pk_bf16_f32 v{II + u}, v7, v6')
    a(f'v_mul_f32 v4, {f32hex(4 / 256.0)}, v3')
    for r in range(4):
        sincos(a, TC + r, TS + r, 1, r / 256.0, 4, 5)
    if stamp:
        a('s_memtime s[54:55]')
    a('s_waitcnt vmcnt(2)')
    a('s_barrier')
    for u in range(4):
        a(f'ds_read_b64 {vr(RAW + 2*u, 2)}, v{vR} offset:{u * 1024}')
    a('s_waitcnt lgkmcnt(0)')
    for j in range(2):
        for u in range(4):
            a(f'v_mov_b32 v{OP + 4*j + u}, v{RAW + 2*u + j}')

    def stage(atype, cr, ci):
        for j in range(2):
            for (d, c) in ((DR, cr), (DI, ci)):
                if atype:
                    a(f'v_mfma_f32_16x16x32_bf16 {vr(d + 4*j, 4)}, {vr(OP + 4*j, 4)}, {vr(c, 4)}, 0')
                else:
                    a(f'v_mfma_f32_16x16x32_bf16 {vr(d + 4*j, 4)}, {vr(c, 4)}, {vr(OP + 4*j, 4)}, 0')

    def cmul(j, cs, ss, conj):
        for r in range(4):
            a(f'v_mul_f32 v{T1 + r}, v{DR + 4*j + r}, v{cs + r}')
            a(f'v_mul_f32 v{T2 + r}, v{DI + 4*j + r}, v{cs + r}')
        n1, n2 = ('-', '') if conj else ('', '-')
        for r in range(4):
            a(f'v_fma_f32 v{T1 + r}, {n1}v{DI + 4*j + r}, v{ss + r}, v{T1 + r}')
            a(f'v_fma_f32 v{T2 + r}, {n2}v{DR + 4*j + r}, v{ss + r}, v{T2 + r}')
        for r in range(4):
            a(f'v_cvt_pk_bf16_f32 v{OP + 4*j + r}, v{T1 + r}, v{T2 + r}')

    stage(True, FR, FI)
    for j in range(2):
        cmul(j, TC, TS, False)
    stage(False, FR, FI)
    a('s_waitcnt vmcnt(0)')
    for j in range(2):
        for r in range(4):
            a(f'v_lshlrev_b32 v{WF + r}, 16, v{WT + 4*j + r}')
            a(f'v_and_b32 v{WF + 4 + r}, 0xffff0000, v{WT + 4*j + r}')
        cmul(j, WF, WF + 4, True)
    stage(True, IR, II)
    for j in range(2):
        cmul(j, TC, TS, True)
    stage(False, IR, II)
    if stamp:
        a('s_memtime s[56:57]')
    for r in range(4):
        for j in range(2):
            a(f'v_cvt_pk_bf16_f32 v{RAW + 2*r + j}, v{DR + 4*j + r}, v{DI + 4*j + r}')
        a(f'ds_write_b64 v{vR}, {vr(RAW + 2*r, 2)} offset:{r * 1024}')
    a(f'''
    s_waitcnt lgkmcnt(0)
    s_barrier
    ds_read_b128 {vr(OP, 4)}, v{vLin}
    ds_read_b128 {vr(OP + 4, 4)}, v{vLin} offset:1024
    s_waitcnt lgkmcnt(1)
    buffer_store_dwordx4 {vr(OP, 4)}, v{vG}, s[{SZ}:{SZ+3}], 0 offen{SC1}
    s_waitcnt lgkmcnt(0)
    buffer_store_dwordx4 {vr(OP + 4, 4)}, v{vG}, s[{SZ}:{SZ+3}], 0 offen offset:128{SC1}
    ''')
    if stamp:
        stamp_out(a, sW, 36)
    a.label(f'{name}_end')
    a('s_endpgm')
    prefetch_role(a, f'{name}_pf', f'{name}_end', [(KA_WG, 0, PF2), (KA_WU, 0, PF2)])
    return descriptor(name, 96, 72, 96), [(name, 256, 512, 16384), (name + '+pf', 256 + PF_WGS, 512, 16384)]


P3_E, P3_RS = 16384, 2048 + 64
P3_LDS = P3_E + 8 * P3_RS


def gen_p3(a, names=('p3a_kernel', 'p3b_kernel'), stamp=False, pf_wd=True):
    SX, SZ, S1, SL = 4, 8, 12, 16
    sW, sT0, sT1, sRow = 20, 21, 22, 23
    vL = 0
    ZR, BOP, XR = 8, 16, 24
    CT = 32
    CR, CI, C2, TW = CT, CT + 8, CT, CT + 16
    R8, ST = 80, 82
    DR, DI, Y = 86, 102, TW
    K = DI
    vZ, vX, vXS, vEW, vER, vLN, vTB = 118, 119, 120, 121, 122, 123, 124
    base = entries2(a, names, stamp)
    a(f'''
    s_cmp_ge_u32 s2, 256
    s_cbranch_scc1 {base}_pf
    v_lshrrev_b32 v1, 6, v0
    v_and_b32 v{vL}, 63, v0
    v_readfirstlane_b32 s{sW}, v1
    v_lshlrev_b32 v{vTB}, 4, v{vL}
    ''')
    zoff(a, vZ, vL, sW, 3, 4, sT0, sT1)
    a(f'''
    ; kb = 8(w>>2) + (w&3) + 4h ; k2 = 2(w&1) + 8(w>>1) + 4h
    v_lshrrev_b32 v2, 2, v1
    v_and_b32 v3, 3, v1
    v_lshl_add_u32 v2, v2, 3, v3
    v_lshrrev_b32 v4, 5, v{vL}
    v_lshl_add_u32 v2, v4, 2, v2
    v_cvt_f32_u32 v2, v2
    v_lshrrev_b32 v3, 1, v1
    v_and_b32 v5, 1, v1
    v_lshlrev_b32 v5, 1, v5
    v_lshl_add_u32 v3, v3, 3, v5
    v_lshl_add_u32 v3, v4, 2, v3
    v_cvt_f32_u32 v3, v3
    ; n1 = 16*((i>>2)&1) + (i&3) + 4*((i>>3)&3)
    v_bfe_u32 v5, v{vL}, 2, 1
    v_and_b32 v6, 3, v{vL}
    v_lshl_add_u32 v6, v5, 4, v6
    v_bfe_u32 v5, v{vL}, 3, 2
    v_lshl_add_u32 v6, v5, 2, v6
    v_cvt_f32_u32 v6, v6
    v_mul_f32 v5, {f32hex(1/32.0)}, v6
    v_mul_f32 v5, v5, v2
    v_cos_f32 v{DR}, v5
    v_sin_f32 v{DR+1}, v5
    v_mul_f32 v5, {f32hex(1/1024.0)}, v6
    v_mul_f32 v6, v5, v3
    v_add_f32 v7, v6, v5
    v_cos_f32 v{K+4}, v6
    v_sin_f32 v{K+5}, v6
    v_cos_f32 v{K+6}, v7
    v_sin_f32 v{K+7}, v7
    v_cvt_pk_bf16_f32 v{K}, v{DR}, -v{DR+1}
    v_cvt_pk_bf16_f32 v{K+1}, v{DR+1}, v{DR}
    v_and_b32 v2, 31, v{vL}
    v_lshlrev_b32 v5, 6, v2
    v_lshl_add_u32 v{vX}, v4, 5, v5
    s_lshl_b32 s{sRow}, s{sW}, 8
    s_add_u32 s{sRow}, s{sRow}, s2
    s_lshl_b32 s{sRow}, s{sRow}, 11
    s_mov_b32 s{sT1}, 16384
    s_waitcnt lgkmcnt(0)
    ''')
    srd(a, SZ, 36, 37, WS_Z, 4 << 20)
    a(f'''
    buffer_load_dwordx4 {vr(ZR, 4)}, v{vZ}, s[{SZ}:{SZ+3}], 0 offen
    buffer_load_dwordx4 {vr(ZR + 4, 4)}, v{vZ}, s[{SZ}:{SZ+3}], s{sT1} offen
    s_add_u32 s40, s36, {hex(WS_X2)}
    s_addc_u32 s41, s37, 0
    s_cmp_eq_u32 s38, 0
    s_cselect_b32 s40, s32, s40
    s_cselect_b32 s41, s33, s41
    ''')
    srd(a, SX, 40, 41, 0, 4 << 20)
    a(f'''
    buffer_load_dwordx4 {vr(XR,4)}, v{vX}, s[{SX}:{SX+3}], s{sRow} offen
    buffer_load_dwordx4 {vr(XR+4,4)}, v{vX}, s[{SX}:{SX+3}], s{sRow} offen offset:16
    v_cvt_f32_u32 v5, v2
    v_mul_f32 v5, {f32hex(1/32.0)}, v5
    v_mul_f32 v6, v5, v3
    v_add_f32 v7, v6, v5
    v_cos_f32 v{DR}, v6
    v_sin_f32 v{DR+1}, v6
    v_cos_f32 v{DR+2}, v7
    v_sin_f32 v{DR+3}, v7
    s_lshr_b32 s{sT0}, s{sW}, 2
    s_lshl_b32 s{sT0}, s{sT0}, 10
    s_and_b32 s{sT1}, s{sW}, 3
    s_lshl_b32 s{sT1}, s{sT1}, 2
    s_add_u32 s{sT0}, s{sT0}, s{sT1}
    v_add_u32 v1, s{sT0}, v{vTB}
    ds_write_b32 v1, v{K}
    ds_write_b32 v1, v{K+1} offset:2048
    v_cvt_pk_bf16_f32 v{K+2}, v{DR}, -v{DR+1}
    v_cvt_pk_bf16_f32 v{K+3}, v{DR+2}, -v{DR+3}
    s_lshr_b32 s{sT0}, s{sW}, 1
    s_lshl_b32 s{sT0}, s{sT0}, 10
    s_and_b32 s{sT1}, s{sW}, 1
    s_lshl_b32 s{sT1}, s{sT1}, 3
    s_add_u32 s{sT0}, s{sT0}, s{sT1}
    v_add_u32 v1, s{sT0}, v{vTB}
    ds_write_b64 v1, {vr(K+2,2)} offset:4096
    s_lshl_b32 s{sT0}, s{sW}, 10
    v_add_u32 v1, s{sT0}, v{vTB}
    ds_write_b128 v1, {vr(K+4,4)} offset:8192
    v_lshl_add_u32 v3, v4, 7, v2
    v_lshlrev_b32 v3, 2, v3
    s_mul_i32 s{sT0}, s{sW}, {P3_RS}
    s_add_u32 s{sT0}, s{sT0}, {P3_E}
    v_add_u32 v{vER}, s{sT0}, v3
    v_lshrrev_b32 v3, 4, v{vL}
    v_mul_u32_u24 v5, {2 * P3_RS}, v3
    v_and_b32 v6, 15, v{vL}
    v_lshl_add_u32 v5, v6, 4, v5
    s_lshl_b32 s{sT0}, s{sW}, 8
    s_add_u32 s{sT0}, s{sT0}, {P3_E}
    v_add_u32 v{vEW}, s{sT0}, v5
    v_lshlrev_b32 v5, 6, v6
    v_lshl_add_u32 v{vXS}, v3, 4, v5
    s_and_b32 s{sT0}, s2, 7
    s_lshl_b32 s{sT0}, s{sT0}, 5
    s_lshr_b32 s{sT1}, s2, 3
    s_add_u32 s{sT0}, s{sT0}, s{sT1}
    s_lshr_b32 s{sT1}, s{sT0}, 2
    s_sub_u32 s{sT1}, 0, s{sT1}
    s_and_b32 s{sT1}, s{sT1}, 3
    v_xor_b32 v3, s{sT1}, v3
    v_lshlrev_b32 v3, 4, v3
    v_lshl_add_u32 v3, v6, 14, v3
    s_lshl_b32 s{sT0}, s{sT0}, 6
    s_lshl_b32 s{sT1}, s{sW}, 19
    s_add_u32 s{sT0}, s{sT0}, s{sT1}
    v_add_u32 v{vLN}, s{sT0}, v3
    ''')
    radix8_const(a, R8, vL, 1, +1, scale=2.0 / (2048 * 1024))
    srd(a, S1, 36, 37, WS_X1, 4 << 20)
    srd(a, SL, 36, 37, WS_LNX, 4 << 20)
    if stamp:
        a('s_memtime s[54:55]')
    a('s_waitcnt vmcnt(2)')
    for m in range(4):
        a(f'v_mov_b32 v{BOP + 2*m}, v{ZR + m}')
        a(f'v_mov_b32 v{BOP + 2*m + 1}, v{ZR + 4 + m}')
    for m in range(4):
        a(f'v_mfma_f32_16x16x16_bf16 {vr(DR + 4*m, 4)}, {vr(R8, 2)}, {vr(BOP + 2*m, 2)}, 0')
    for m in range(4):
        a(f'v_cvt_pk_bf16_f32 v{ZR + m}, v{DR + 4*m}, v{DR + 4*m + 1}')
        a(f'v_cvt_pk_bf16_f32 v{ZR + 4 + m}, v{DR + 4*m + 2}, v{DR + 4*m + 3}')
    a(f'''
    ds_write_b128 v{vEW}, {vr(ZR, 4)}
    ds_write_b128 v{vEW}, {vr(ZR + 4, 4)} offset:{P3_RS}
    v_add_u32 v7, 1024, v{vER}
    s_waitcnt lgkmcnt(0)
    s_barrier
    ds_read2_b32 {vr(BOP, 2)}, v{vER} offset0:0 offset1:32
    ds_read2_b32 {vr(BOP + 2, 2)}, v{vER} offset0:64 offset1:96
    ds_read2_b32 {vr(BOP + 4, 2)}, v7 offset0:0 offset1:32
    ds_read2_b32 {vr(BOP + 6, 2)}, v7 offset0:64 offset1:96
    ''')
    for g in (0, 2, 1, 3):
        a(f'ds_read_b128 {vr(CT + 4*g, 4)}, v{vTB} offset:{g * 1024}')
    for g in range(8):
        a(f'ds_read_b128 {vr(TW + 4*g, 4)}, v{vTB} offset:{(8 + g) * 1024}')
    a(f'''
    s_waitcnt lgkmcnt(12)
    v_readlane_b32 s24, v{BOP}, 0
    v_writelane_b32 v{BOP}, 0, 0
    ''')
    for q in range(2):
        a(f's_waitcnt lgkmcnt({10 - 2*q})')
        for (d, c) in ((DR, CR), (DI, CI)):
            cc = '0' if q == 0 else vr(d, 16)
            a(f'v_mfma_f32_32x32x16_bf16 {vr(d,16)}, {vr(BOP + 4*q, 4)}, {vr(c + 4*q, 4)}, {cc}')
    for g in range(4):
        a(f'ds_read_b128 {vr(C2 + 4*g, 4)}, v{vTB} offset:{(4 + g) * 1024}')
    a('s_lshl_b32 s24, s24, 16')
    a('v_mul_f32_e64 v5, 0.5, s24')
    a('s_waitcnt lgkmcnt(4)')
    P = ZR

    def yinit(r0):
        if r0 == 8:
            for r in range(16):
                if r & 1:
                    a(f'v_sub_f32 v{Y + r}, 0, v5')
                else:
                    a(f'v_mov_b32 v{Y + r}, v5')
    twiddle(a, DR, DI, TW, P, True, 1, ST, hook=yinit)
    a('s_waitcnt lgkmcnt(0)')
    for q in range(4):
        a(f'v_mfma_f32_32x32x16_bf16 {vr(Y, 16)}, {vr(P + 4*q, 4)}, {vr(C2 + 4*q, 4)}, {vr(Y, 16)}')
    if stamp:
        a('s_memtime s[56:57]')
    a('s_waitcnt vmcnt(0)')
    XF = DR
    for c in range(8):
        a(f'v_lshlrev_b32 v{XF + 2*c}, 16, v{XR + c}')
        a(f'v_and_b32 v{XF + 2*c + 1}, 0xffff0000, v{XR + c}')
    for c in range(8):
        a(f'v_cvt_pk_bf16_f32 v{ZR + c}, v{Y + 2*c}, v{Y + 2*c + 1}')
    for c in range(8):
        a(f'v_lshlrev_b32 v{Y + 2*c}, 16, v{ZR + c}')
        a(f'v_and_b32 v{Y + 2*c + 1}, 0xffff0000, v{ZR + c}')
    for c in range(8):
        a(f'v_pk_add_f32 {vr(XF + 2*c, 2)}, {vr(XF + 2*c, 2)}, {vr(Y + 2*c, 2)}')
    for c in range(8):
        a(f'v_cvt_pk_bf16_f32 v{XR + c}, v{XF + 2*c}, v{XF + 2*c + 1}')
    for c in range(8):
        a(f'v_lshlrev_b32 v{XF + 2*c}, 16, v{XR + c}')
        a(f'v_and_b32 v{XF + 2*c + 1}, 0xffff0000, v{XR + c}')
    for c in range(4):
        a(f'v_permlane16_swap_b32 v{XR + c}, v{XR + 4 + c}')
    a(f'buffer_store_dwordx4 {vr(XR, 4)}, v{vXS}, s[{S1}:{S1+3}], s{sRow} offen{SC1}')
    a(f'buffer_store_dwordx4 {vr(XR + 4, 4)}, v{vXS}, s[{S1}:{S1+3}], s{sRow} offen offset:1024{SC1}')
    ln_stats(a, XF, ST, None)
    a(f'v_add_f32 v{ST}, v{ST}, v{ST + 1}')
    wave_reduce(a, [ST, ST + 2], [24, 26])
    a('s_mov_b32 s25, 0')
    ln_finish(a, 24, 25, 26, ST)
    for c in range(8):
        a(f'v_pk_fma_f32 {vr(XF + 2*c, 2)}, {vr(XF + 2*c, 2)}, {vr(ST,2)}, {vr(ST+2,2)} op_sel_hi:[1,0,0]')
    for i, c in enumerate([0, 1, 4, 5, 2, 3, 6, 7]):
        a(f'v_cvt_pk_bf16_f32 v{ZR + i}, v{XF + 2*c}, v{XF + 2*c + 1}')
    a(f's_mov_b32 s{sT0}, {16 << 14}')
    for c in range(4):
        a(f'v_permlane16_swap_b32 v{ZR + c}, v{ZR + 4 + c}')
    a(f'buffer_store_dwordx4 {vr(ZR, 4)}, v{vLN}, s[{SL}:{SL+3}], 0 offen{SC1}')
    a(f'buffer_store_dwordx4 {vr(ZR + 4, 4)}, v{vLN}, s[{SL}:{SL+3}], s{sT0} offen{SC1}')
    if stamp:
        stamp_out(a, sW, 36)
    a.label(f'{base}_end')
    a('s_endpgm')
    items = [(KA_WG, PF2, PF3), (KA_WU, PF2, PF3)]
    prefetch_role(a, f'{base}_pf', f'{base}_end', items)
    return (''.join(descriptor(n, 128, 72, 128) for n in names), [(n, 256 + PF_WGS * (n == names[0]), 512, P3_LDS) for n in names])
```

```python
from build import *
from gen_g2n import *
from gen_p import gen_fin
from gen_p2 import *
import functools
P = functools.partial
LIST = ['p1a_kernel', 'p2_kernel+pf', 'p3a_kernel', 'g1_kernel', 'g2a_kernel', 'p1b_kernel', 'p2_kernel', 'p3b_kernel', 'g1_kernel', 'g2a_kernel', 'fin_kernel']
GENS = (gen_p1, gen_p2, gen_p3, gen_g1, gen_g2n, gen_fin)
if __name__ == '__main__':
    assemble(GENS, LIST, 'full.s')
    assemble([P(g, stamp=True) for g in GENS], LIST, 'full_st.s')
```

```python
import sys
from full import *
M = sys.modules['gen_p2']
def build(name, pf2, pf3, wd=True, lst=None):
    M.PF2, M.PF3 = pf2, pf3
    gens = (gen_p1, gen_p2, gen_p3, P(gen_g1, pf_wd=wd), gen_g2n, gen_fin)
    assemble(gens, lst or LIST, name)
MB = 1 << 20
build('../cdna_kernels/va.s', 2 * MB, 3 * MB)
build('../cdna_kernels/vb.s', 4096, 4096)
build('../cdna_kernels/vc.s', 3 * MB, 4 * MB)
build('../cdna_kernels/vd.s', 2 * MB, 3 * MB, wd=False)
build('../cdna_kernels/ve.s', 1 * MB, 2 * MB)
```

```python
from asmlib import *

NSPLIT = 2
WS_Z, WS_X1, WS_LNX, WS_X2, WS_H = 0, 4 << 20, 8 << 20, 4 << 20, 24 << 20
WS_P = 4 << 20
WS_FL = 12 << 20
H_BYTES = 128 * 112 * 1024
KA_X, KA_WR, KA_WI, KA_WG, KA_WU, KA_WD, KA_OUT, KA_DBG, KA_WS = 0, 8, 16, 32, 40, 48, 56, 64, 72


def kernel_start(a, name):
    a.raw('.p2align 8')
    a.raw(f'.globl {name}')
    a.raw(f'.type {name},@function')
    a.label(name)


def descriptor(name, vgpr, sgpr, accum):
    return f'''.p2align 6
.amdhsa_kernel {name}
  .amdhsa_next_free_vgpr {vgpr}
  .amdhsa_next_free_sgpr {sgpr}
  .amdhsa_accum_offset {accum}
  .amdhsa_group_segment_fixed_size 0
  .amdhsa_kernarg_size 80
  .amdhsa_user_sgpr_count 2
  .amdhsa_user_sgpr_kernarg_segment_ptr 1
  .amdhsa_system_sgpr_workgroup_id_x 1
  .amdhsa_float_denorm_mode_32 3
.end_amdhsa_kernel
'''


def srd(a, d, lo, hi, off, nbytes):
    if off == 0:
        a(f's_mov_b32 s{d}, s{lo}')
        a(f's_mov_b32 s{d+1}, s{hi}')
    else:
        o = off if isinstance(off, str) else hex(off)
        a(f's_add_u32 s{d}, s{lo}, {o}')
        a(f's_addc_u32 s{d+1}, s{hi}, 0')
    a(f's_mov_b32 s{d+2}, {hex(nbytes)}')
    a(f's_mov_b32 s{d+3}, 0x20000')


def f32hex(x):
    import struct
    return hex(struct.unpack('<I', struct.pack('<f', x))[0])


def stamp_out(a, sW, ws, alt=None):
    a(f'''
    s_waitcnt vmcnt(0)
    s_memtime s[58:59]
    s_memrealtime s[60:61]
    s_load_dword s63, s[0:1], {KA_DBG}
    s_waitcnt lgkmcnt(0)
    s_bfe_u32 s63, s63, 0x50009
    s_lshl_b32 s63, s63, 17
    s_lshl_b32 s62, s2, 3
    s_add_u32 s62, s62, s{sW}
    s_lshl_b32 s62, s62, 6
    s_add_u32 s62, s62, {40 << 20}
    s_add_u32 s62, s62, s63
    ''')
    if alt:
        a(f's_mov_b64 s[58:59], s[{alt}:{alt+1}]')
    srd(a, 68, ws, ws + 1, 's62', 64)
    for i in range(12):
        a(f'v_mov_b32 v{i}, s{50 + i}')
    a('v_mov_b32 v12, 0')
    a('s_mov_b64 exec, 1')
    for i in range(3):
        a(f'buffer_store_dwordx4 v[{4*i}:{4*i+3}], v12, s[68:71], 0 offen offset:{16*i}')
```

```python
from gen_common import *
import math

G1_ST = 31776
G1_GOFF, G1_UOFF, G1_JUNK = 16384, 23568, 30752
G1_NST = 4
G1_LDS = G1_ST * G1_NST


def gen_g1(a, name='g1_kernel', dma_at=(2, 9, 16, 23), rd_start=0, rd_step=1, prio=False, no_dma=False, no_rd=False, stamp=False, no_bar=False, same_tile=False, w_al=False, dma_sel=(0,1,2,3), lin_w=False, no_mfma=False, stamp_pro=False, trace=False, st_flags=' sc1', pf_wd=True, agpr=False, mt_major=False, w128=False, snake=True, merge=False, pk=True):
    for s in range(448):
        assert (s * 4682) >> 16 == s // 14
    SA, SG, SU, SH = 4, 8, 12, 16
    sW, sMT, sNT, sOA, sOW, sMA, sMG, sMU, sCNT = 20, 21, 22, 23, 24, 25, 26, 27, 28
    sT0, sT1, sT2 = 29, 30, 31
    ACC = 0
    XF = [112, 128]
    WF = [144, 172]
    vX, vG, vM = [200, 201], [202, 203], [204, 205]
    vDA, vDW = 206, 207
    vL, vT0, vT1, vT2, vT3 = 208, 209, 210, 211, 212
    if agpr:
        XF, WF = [0, 16], [32, 60]
        vX, vG, vM = [88, 89], [90, 91], [92, 93]
        vDA, vDW = 94, 95
        vL, vT0, vT1, vT2, vT3 = 96, 97, 98, 99, 100
    acc = lambda mt, t: ACC + (mt * 7 + t) * 4

    lin_w_code = f'''s_mul_i32 s{sT0}, s{sNT}, {32*7168}
    s_lshl_b32 s{sT1}, s{sW}, 10
    s_add_u32 s{sT0}, s{sT0}, s{sT1}
    s_cmp_eq_u32 s{sW}, 7
    s_cselect_b32 s{sT0}, 0x40000000, s{sT0}
    v_lshlrev_b32 v{vDW}, 4, v{vL}
    v_add_u32 v{vDW}, s{sT0}, v{vDW}''' if lin_w else ''
    wstep = 7168 if lin_w else 32 * 7168
    kernel_start(a, name)
    a(f'''
    s_cmp_ge_u32 s2, 256
    s_cbranch_scc1 {name}_end
    {'s_memtime s[50:51]' if stamp else ''}
    {'s_memrealtime s[52:53]' if stamp else ''}
    s_load_dwordx4 s[32:35], s[0:1], {KA_WG}
    s_load_dwordx2 s[36:37], s[0:1], {KA_WS}
    s_load_dwordx2 s[44:45], s[0:1], {KA_WD}
    v_lshrrev_b32 v{vT0}, 6, v0
    v_and_b32 v{vL}, 63, v0
    v_readfirstlane_b32 s{sW}, v{vT0}
    s_and_b32 s{sT0}, s2, 7
    s_lshr_b32 s{sT1}, s2, 3
    s_and_b32 s{sMT}, s{sT0}, 1
    s_lshl_b32 s{sMT}, s{sMT}, 2
    s_and_b32 s{sT2}, s{sT1}, 3
    s_add_u32 s{sMT}, s{sMT}, s{sT2}
    s_lshr_b32 s{sNT}, s{sT0}, 1
    s_lshl_b32 s{sNT}, s{sNT}, 3
    s_lshr_b32 s{sT2}, s{sT1}, 2
    s_add_u32 s{sNT}, s{sNT}, s{sT2}
    s_lshl_b32 s{sMA}, s{sW}, 11
    v_lshlrev_b32 v{vDA}, 4, v{vL}
    v_add_u32 v{vDA}, s{sMA}, v{vDA}
    s_lshl_b32 s{sT0}, s{sW}, 6
    v_add_u32 v{vT0}, s{sT0}, v{vL}
    v_mul_u32_u24 v{vT1}, 4682, v{vT0}
    v_lshrrev_b32 v{vT1}, 16, v{vT1}
    v_mul_u32_u24 v{vT2}, 14, v{vT1}
    v_sub_u32 v{vT2}, v{vT0}, v{vT2}
    v_mul_u32_u24 v{vT1}, 7168, v{vT1}
    v_lshl_add_u32 v{vDW}, v{vT2}, 4, v{vT1}
    s_mul_i32 s{sT0}, s{sNT}, {0 if same_tile else (256 if w_al else 224)}
    s_lshl_b32 s{sMG}, s{sW}, 10
    s_add_u32 s{sMU}, s{sMG}, {G1_UOFF}
    s_add_u32 s{sMG}, s{sMG}, {G1_GOFF}
    s_cmp_eq_u32 s{sW}, 7
    s_cselect_b32 s{sT0}, 0x40000000, s{sT0}
    s_cselect_b32 s{sMG}, {G1_JUNK}, s{sMG}
    s_cselect_b32 s{sMU}, {G1_JUNK}, s{sMU}
    v_add_u32 v{vDW}, s{sT0}, v{vDW}
    {lin_w_code}
    s_lshl_b32 s{sT0}, s{sMT}, 19
    {f's_mov_b32 s{sT0}, 0' if same_tile else ''}
    s_add_u32 s{sT0}, s{sT0}, {hex(WS_LNX)}
    s_waitcnt lgkmcnt(0)
    ''')
    if stamp_pro:
        a('s_memtime s[54:55]')
    srd(a, SA, 36, 37, f's{sT0}', 512 * 1024)
    srd(a, SG, 32, 33, 0, 1024 * 3584 * 2)
    srd(a, SU, 34, 35, 0, 1024 * 3584 * 2)
    srd(a, SH, 36, 37, WS_H, H_BYTES)
    a(f's_mov_b32 s{sOA}, 0')
    a(f's_mov_b32 s{sOW}, 0')

    def dma_ops(slot):
        b = slot * G1_ST
        return [
            [f's_add_u32 m0, s{sMA}, {b}', f'buffer_load_dwordx4 v{vDA}, s[{SA}:{SA+3}], s{sOA} offen lds'],
            [f'buffer_load_dwordx4 v{vDA}, s[{SA}:{SA+3}], s{sOA} offen offset:1024 lds', f's_add_u32 s{sOA}, s{sOA}, 16384'],
            [f's_add_u32 m0, s{sMG}, {b}', f'buffer_load_dwordx4 v{vDW}, s[{SG}:{SG+3}], s{sOW} offen lds'],
            [f's_add_u32 m0, s{sMU}, {b}', f'buffer_load_dwordx4 v{vDW}, s[{SU}:{SU+3}], s{sOW} offen lds',
             f's_add_u32 s{sOW}, s{sOW}, {wstep}'],
        ]

    def emit(groups):
        for grp in groups:
            for ins in grp:
                a(ins)

    emit(dma_ops(0))
    if stamp_pro:
        a('s_memtime s[56:57]')
    a(f'''
    v_and_b32 v{vT0}, 15, v{vL}
    v_lshrrev_b32 v{vT1}, 4, v{vL}
    v_lshrrev_b32 v{vT2}, 2, v{vT0}
    v_sub_u32 v{vT3}, 0, v{vT2}
    v_and_b32 v{vT3}, 3, v{vT3}
    v_xor_b32 v{vT3}, v{vT3}, v{vT1}
    v_lshlrev_b32 v{vT3}, 4, v{vT3}
    v_lshl_add_u32 v{vX[0]}, v{vT0}, 6, v{vT3}
    s_and_b32 s{sT0}, s{sW}, 3
    s_lshl_b32 s{sT0}, s{sT0}, 12
    v_add_u32 v{vX[0]}, s{sT0}, v{vX[0]}
    v_lshrrev_b32 v{vT3}, 1, v{vT1}
    v_lshl_add_u32 v{vT2}, v{vT3}, 4, v{vT2}
    v_and_b32 v{vT3}, 1, v{vT1}
    v_lshl_add_u32 v{vT2}, v{vT3}, 2, v{vT2}
    v_mul_u32_u24 v{vT2}, 224, v{vT2}
    s_lshr_b32 s{sT0}, s{sW}, 2
    s_mul_i32 s{sT0}, s{sT0}, 112
    v_add_u32 v{vT2}, s{sT0}, v{vT2}
    v_and_b32 v{vT3}, 3, v{vL}
    v_lshl_add_u32 v{vG[0]}, v{vT3}, 3, v{vT2}
    v_and_b32 v{vT3}, 1, v{vL}
    v_lshl_add_u32 v{vM[0]}, v{vT3}, 3, v{vT2}
    v_bfe_u32 v{vT3}, v{vL}, 1, 1
    v_mul_u32_u24 v{vT3}, {G1_UOFF - G1_GOFF}, v{vT3}
    v_add_u32 v{vM[0]}, v{vM[0]}, v{vT3}
    v_add_u32 v{vX[1]}, {2 * G1_ST}, v{vX[0]}
    v_add_u32 v{vG[1]}, {2 * G1_ST}, v{vG[0]}
    v_add_u32 v{vM[1]}, {2 * G1_ST}, v{vM[0]}
    ''')
    emit(dma_ops(1))

    def read_ops(slot, p):
        hi, b = slot >> 1, (slot & 1) * G1_ST
        ops = []
        xs = [f'ds_read_b128 {vr(XF[p] + 4 * mt, 4)}, v{vX[hi]} offset:{b + mt * 1024}' for mt in range(4)]
        ws = []
        for t in range(7):
            for jj in range(2):
                if t < 6:
                    off = b + (G1_UOFF if t & 1 else G1_GOFF) + (t >> 1) * 32 + jj * 8 * 224
                    ad = vG[hi]
                else:
                    off = b + G1_GOFF + 96 + jj * 8 * 224
                    ad = vM[hi]
                ws.append(f'ds_read_b64_tr_b16 {vr(WF[p] + 4 * t + 2 * jj, 2)}, v{ad} offset:{off}')
        if w128:
            ws = [f'ds_read_b128 {vr(WF[p] + 4 * t, 4)}, v{vX[hi]} offset:{b + 4096 + t * 1024}' for t in range(7)]
        return xs + ws

    def mfmas(p, first=False):
        out = []
        order = [(t, mt) for t in range(7) for mt in range(4)]
        if mt_major:
            order = [(t, mt) for mt in range(4) for t in range(7)]
        if snake:
            order = [(t, mt if t % 2 == 0 else 3 - mt) for t in range(7) for mt in range(4)]
        rr = ar if agpr else vr
        for (t, mt) in order:
            c = '0' if first else rr(acc(mt, t), 4)
            out.append(f'v_mfma_f32_16x16x32_bf16 {rr(acc(mt, t), 4)}, {vr(WF[p] + 4 * t, 4)}, {vr(XF[p] + 4 * mt, 4)}, {c}')
        return out

    a('s_waitcnt vmcnt(4)')
    a('s_barrier')
    for ins in read_ops(0, 0):
        a(ins)
    if stamp and not stamp_pro:
        a('s_memtime s[54:55]')
    if stamp_pro:
        a('s_memtime s[68:69]')
    a('s_waitcnt lgkmcnt(0)')
    mf = mfmas(0, True)
    dm = dma_ops(2) + dma_ops(3)
    for i in range(12):
        a(mf[i])
        if i % 3 != 2:
            emit([dm.pop(0)])
    assert not dm
    a('s_waitcnt vmcnt(8)')
    a('s_barrier')
    rds, dm = read_ops(1, 1), dma_ops(0)
    for i in range(12, 28):
        a(mf[i])
        if rds:
            a(rds.pop(0))
        if i < 15 and rds:
            a(rds.pop(0))
        if i in (16, 19, 22, 25):
            emit([dm.pop(0)])
    assert not rds and not dm

    def step(u, dma, wait, reads, pf=False):
        p = u & 1
        a(f's_waitcnt vmcnt({wait}) lgkmcnt(0)')
        if reads:
            a('s_barrier')
        rds = read_ops((u + 1) % G1_NST, p ^ 1) if reads else []
        dms = dma_ops(u) if dma else []
        if pf:
            dms = [[f's_add_u32 m0, s{sMA}, {u * G1_ST}', f'buffer_load_dwordx4 v{vDA}, s[{SG}:{SG+3}], s{sOA} offen lds'],
                   [f'buffer_load_dwordx4 v{vDA}, s[{SG}:{SG+3}], s{sOA} offen offset:1024 lds'],
                   [f'buffer_load_dwordx4 v{vDA}, s[{SG}:{SG+3}], s{sOW} offen lds'],
                   [f'buffer_load_dwordx4 v{vDA}, s[{SG}:{SG+3}], s{sOW} offen offset:1024 lds']]
        for i, m in enumerate(mfmas(p)):
            a(m)
            if dms and i in dma_at:
                emit([dms.pop(0)])
            if rds:
                a(rds.pop(0))
        assert not rds and not dms

    a(f's_mov_b32 s{sCNT}, 7')
    a.raw('.p2align 6')
    a.label(f'{name}_loop')
    if trace:
        a('s_memtime s[70:71]')
        a('s_memrealtime s[72:73]')
        a('s_waitcnt lgkmcnt(0)')
        a(f's_sub_u32 s74, 7, s{sCNT}')
        a(f'v_cmp_eq_u32 vcc, s74, v{vL}')
        a('v_mov_b32 v213, s70')
        a('v_cndmask_b32 v214, v214, v213, vcc')
        a('v_mov_b32 v213, s72')
        a('v_cndmask_b32 v215, v215, v213, vcc')
    for u in (1, 2, 3, 0):
        step(u, True, 8, True)
    a(f's_sub_u32 s{sCNT}, s{sCNT}, 1')
    a(f's_cmp_lg_u32 s{sCNT}, 0')
    a(f's_cbranch_scc1 {name}_loop')
    if pf_wd:
        srd(a, SG, 44, 45, 0, 1024 * 3584 * 2)
        a(f's_lshl_b32 s{sOA}, s2, 15')
        a(f's_add_u32 s{sOW}, s{sOA}, 16384')
    step(1, False, 8, True, pf=pf_wd)
    if not merge:
        step(2, False, 8 if pf_wd else 4, True)
        step(3, False, 63, False)

    if stamp and not stamp_pro:
        a('s_memtime s[56:57]')
    if agpr:
        stamp_out(a, sW, 36)
        a.label(f'{name}_end')
        a('s_endpgm')
        return descriptor(name, 104 + 112, 80, 104), (name, 256, 512, G1_LDS)
    c1 = -2.0 * math.log2(math.e) * math.sqrt(2.0 / math.pi)
    c2 = c1 * 0.044715
    vC1, vONE, vTMP, vO = 216, 218, 220, 228
    vS1, vS2, vS3 = 213, 214, 215
    a(f'''
    s_mov_b32 s38, {f32hex(c2)}
    s_mov_b32 s39, {f32hex(c2)}
    v_mov_b32 v{vC1}, {f32hex(c1)}
    v_mov_b32 v{vC1+1}, {f32hex(c1)}
    v_mov_b32 v{vONE}, 1.0
    v_mov_b32 v{vONE+1}, 1.0
    s_and_b32 s{sT0}, s{sW}, 3
    s_lshl_b32 s{sT0}, s{sT0}, 2
    s_lshl_b32 s{sT1}, s{sMT}, 4
    s_add_u32 s{sT0}, s{sT0}, s{sT1}
    s_mul_i32 s{sT0}, s{sT0}, {112 * 1024}
    s_lshr_b32 s{sT1}, s{sW}, 2            ; nh
    s_lshl_b32 s40, s{sNT}, 1
    s_add_u32 s40, s40, s{sT1}
    s_and_b32 s40, s40, {64 // NSPLIT - 1}
    s_lshr_b32 s43, s{sNT}, {4 if NSPLIT == 2 else 3}
    s_mul_i32 s43, s43, {112 // NSPLIT}
    s_add_u32 s40, s40, s43
    s_lshl_b32 s40, s40, 10
    s_add_u32 s40, s40, s{sT0}
    s_and_b32 s41, s{sNT}, {32 // NSPLIT - 1}
    s_add_u32 s41, s41, s43
    s_add_u32 s41, s41, {64 // NSPLIT}
    s_lshl_b32 s41, s41, 10
    s_add_u32 s41, s41, s{sT0}             ; type-2
    s_lshr_b32 s42, s{sNT}, 1
    s_and_b32 s42, s42, {16 // NSPLIT - 1}
    s_add_u32 s42, s42, s43
    s_add_u32 s42, s42, {96 // NSPLIT}
    s_lshl_b32 s42, s42, 10
    s_add_u32 s42, s42, s{sT0}             ; type-3
    v_lshlrev_b32 v{vS1}, 4, v{vL}
    v_and_b32 v{vT1}, 15, v{vL}
    v_lshlrev_b32 v{vT1}, 4, v{vT1}
    v_bfe_u32 v{vT0}, v{vL}, 4, 1
    v_mul_u32_u24 v{vT2}, {112 * 1024}, v{vT0}
    v_lshrrev_b32 v{vT3}, 5, v{vL}
    v_lshl_add_u32 v{vS2}, v{vT3}, 8, v{vT2}
    v_add_u32 v{vS2}, v{vS2}, v{vT1}
    s_lshl_b32 s{sT2}, s{sT1}, 9
    v_add_u32 v{vS2}, s{sT2}, v{vS2}
    v_lshl_add_u32 v{vT0}, v{vT0}, 1, v{vT3}
    v_mul_u32_u24 v{vS3}, {112 * 1024}, v{vT0}
    v_add_u32 v{vS3}, v{vS3}, v{vT1}
    s_and_b32 s{sT2}, s{sNT}, 1
    s_lshl_b32 s{sT2}, s{sT2}, 1
    s_add_u32 s{sT2}, s{sT2}, s{sT1}
    s_lshl_b32 s{sT2}, s{sT2}, 8
    v_add_u32 v{vS3}, s{sT2}, v{vS3}
    ''')

    def gelu4(g, u, out):
        T, P = vTMP, vTMP + 4
        L = []
        if not pk_now[0]:
            L += [f'v_mul_f32 v{T+h}, v{g+h}, v{g+h}' for h in range(4)]
            L += [f'v_fma_f32 v{T+h}, v{T+h}, s38, v{vC1}' for h in range(4)]
            L += [f'v_mul_f32 v{T+h}, v{T+h}, v{g+h}' for h in range(4)]
            L += [f'v_exp_f32 v{T+h}, v{T+h}' for h in range(4)]
            L += [f'v_mul_f32 v{P+h}, v{g+h}, v{u+h}' for h in range(4)]
            L += [f'v_add_f32 v{T+h}, 1.0, v{T+h}' for h in range(4)]
            L += [f'v_rcp_f32 v{T+h}, v{T+h}' for h in range(4)]
            L += [f'v_mul_f32 v{P+h}, v{P+h}, v{T+h}' for h in range(4)]
            L.append(f'v_cvt_pk_bf16_f32 v{out}, v{P}, v{P+1}')
            L.append(f'v_cvt_pk_bf16_f32 v{out+1}, v{P+2}, v{P+3}')
            return L
        for h in (0, 2):
            L.append(f'v_pk_mul_f32 {vr(T+h,2)}, {vr(g+h,2)}, {vr(g+h,2)}')
        for h in (0, 2):
            L.append(f'v_pk_fma_f32 {vr(T+h,2)}, {vr(T+h,2)}, s[38:39], {vr(vC1,2)}')
        for h in (0, 2):
            L.append(f'v_pk_mul_f32 {vr(T+h,2)}, {vr(T+h,2)}, {vr(g+h,2)}')
        for h in range(4):
            L.append(f'v_exp_f32 v{T+h}, v{T+h}')
        for h in (0, 2):
            L.append(f'v_pk_mul_f32 {vr(P+h,2)}, {vr(g+h,2)}, {vr(u+h,2)}')
        for h in (0, 2):
            L.append(f'v_pk_add_f32 {vr(T+h,2)}, {vr(T+h,2)}, {vr(vONE,2)}')
        for h in range(4):
            L.append(f'v_rcp_f32 v{T+h}, v{T+h}')
        for h in (0, 2):
            L.append(f'v_pk_mul_f32 {vr(P+h,2)}, {vr(P+h,2)}, {vr(T+h,2)}')
        L.append(f'v_cvt_pk_bf16_f32 v{out}, v{P}, v{P+1}')
        L.append(f'v_cvt_pk_bf16_f32 v{out+1}, v{P+2}, v{P+3}')
        return L

    M3 = vO + 16
    pk_now = [pk]

    def epi(mt):
        L = []
        o = vO + 4 * (mt & 1)
        o2 = vO + 8 + 4 * (mt >> 1)
        L += gelu4(acc(mt, 0), acc(mt, 1), o)
        L += gelu4(acc(mt, 2), acc(mt, 3), o + 2)
        L.append(f'buffer_store_dwordx4 {vr(o,4)}, v{vS1}, s[{SH}:{SH+3}], s40 offen{st_flags}')
        L += gelu4(acc(mt, 4), acc(mt, 5), o2 + 2 * (mt & 1))
        if mt & 1:
            L.append(f'v_permlane16_swap_b32 v{o2}, v{o2+2}')
            L.append(f'v_permlane16_swap_b32 v{o2+1}, v{o2+3}')
            L.append(f'buffer_store_dwordx4 {vr(o2,4)}, v{vS2}, s[{SH}:{SH+3}], s41 offen{st_flags}')
            L.append(f's_add_u32 s41, s41, {2 * 112 * 1024}')
            for r in range(4):
                L.append(f'v_permlane32_swap_b32 v{acc(mt-1,6)+r}, v{acc(mt,6)+r}')
            L += gelu4(acc(mt - 1, 6), acc(mt, 6), M3 + 2 * (mt >> 1))
        if mt < 3:
            L.append(f's_add_u32 s40, s40, {112 * 1024}')
        else:
            L.append(f'v_permlane16_swap_b32 v{M3}, v{M3+2}')
            L.append(f'v_permlane16_swap_b32 v{M3+1}, v{M3+3}')
            L.append(f'buffer_store_dwordx4 {vr(M3,4)}, v{vS3}, s[{SH}:{SH+3}], s42 offen{st_flags}')
        return L

    if merge:
        a(f's_waitcnt vmcnt({8 if pf_wd else 4}) lgkmcnt(0)')
        a('s_barrier')
        rd = read_ops(3, 1)
        rd = [rd[0]] + rd[4:] + rd[1:4]
        mm = lambda p, mt, t: f'v_mfma_f32_16x16x32_bf16 {vr(acc(mt, t), 4)}, {vr(WF[p] + 4 * t, 4)}, {vr(XF[p] + 4 * mt, 4)}, {vr(acc(mt, t), 4)}'
        for t in range(7):
            a(mm(0, 0, t))
            for _ in range(3):
                if rd:
                    a(rd.pop(0))
        for t in range(7):
            a(f's_waitcnt lgkmcnt({15 - 2 * t})')
            a(mm(1, 0, t))
        a('s_waitcnt lgkmcnt(0)')
        for mt in range(1, 4):
            L = epi(mt - 1)
            n = len(L)
            ms = [mm(p, mt, t) for p in range(2) for t in range(7)]
            for i, m in enumerate(ms):
                a(m)
                for x in L[n * i // 14:n * (i + 1) // 14]:
                    a(x)
        for x in epi(3):
            a(x)
    else:
        for mt in range(4):
            for x in epi(mt):
                a(x)
    if trace:
        a('s_memtime s[70:71]')
        a('s_memrealtime s[72:73]')
        a('s_load_dword s63, s[0:1], 64')
        a('s_waitcnt lgkmcnt(0)')
        a('v_writelane_b32 v214, s70, 7')
        a('v_writelane_b32 v215, s72, 7')
        a('v_writelane_b32 v214, s50, 8')
        a('v_writelane_b32 v215, s52, 8')
        a('s_bfe_u32 s63, s63, 0x50009')
        a('s_lshl_b32 s63, s63, 20')
        a('s_lshl_b32 s62, s2, 3')
        a(f's_add_u32 s62, s62, s{sW}')
        a('s_lshl_b32 s62, s62, 9')
        a('s_add_u32 s62, s62, s63')
        a(f's_add_u32 s62, s62, {44 << 20}')
        srd(a, 64, 36, 37, 's62', 512)
        a(f'v_lshlrev_b32 v213, 3, v{vL}')
        a('buffer_store_dwordx2 v[214:215], v213, s[64:67], 0 offen')
    if stamp:
        stamp_out(a, sW, 36, 68 if stamp_pro else None)
    a.label(f'{name}_end')
    a('s_endpgm')
    return descriptor(name, 248, 80, 248), (name, 256, 512, G1_LDS)
```

```python
from gen_common import *

G2_ST = 32768
G2_ROLE = 4 * G2_ST
G2F_LDS = 4 * G2_ST + 64
MT_STRIDE = 112 * 1024


def gen_g2f(a, names=('g2a_kernel', 'g2b_kernel'), stamp=False, dma_at=(0, 3, 6, 9), st_flags=' sc1'):
    SH, SD, SR, SO, SF = 4, 8, 12, 16, 64
    sW, sM, sN, sA, sLo, sHiD, sStep, sIt, sMA, sK = 20, 21, 22, 23, 24, 25, 26, 27, 28, 44
    sT0, sT1, sT2, sLo2, sLo3, sHi, sRole, sMode, sTk = 29, 30, 31, 42, 43, 45, 46, 47, 49
    acc = lambda q, t: (q * 4 + t) * 4
    HF, WF = [64, 80], [96, 112]
    vH, vH2 = [128, 129], [146, 147]
    vWt = [[130, 131, 132, 133], [134, 135, 136, 137]]
    vDA, vDB, vL, vT0, vT1, vT2, vT3, vO = 138, 139, 140, 141, 142, 143, 144, 145
    vTk, vRes = 148, 152
    base = names[0][:-8]
    for li, name in enumerate(names):
        kernel_start(a, name)
        if stamp:
            a('s_memtime s[50:51]\ns_memrealtime s[52:53]')
        a(f's_load_dwordx2 s[36:37], s[0:1], {KA_WS}')
        a(f's_load_dwordx4 s[32:35], s[0:1], {KA_WD}')
        a(f's_mov_b32 s{sMode}, {li}')
        if li == 0:
            a(f's_branch {base}_body')
    a.label(f'{base}_body')
    a(f'''
    s_cmp_ge_u32 s2, 256
    s_cbranch_scc1 {base}_end
    v_lshrrev_b32 v{vT0}, 6, v0
    v_and_b32 v{vL}, 63, v0
    v_readfirstlane_b32 s{sW}, v{vT0}
    s_and_b32 s{sT0}, s2, 7
    s_lshr_b32 s{sT1}, s2, 3
    s_and_b32 s{sK}, s{sT0}, 1
    s_lshr_b32 s{sM}, s{sT0}, 1
    s_lshl_b32 s{sM}, s{sM}, 2
    s_and_b32 s{sT2}, s{sT1}, 3
    s_add_u32 s{sM}, s{sM}, s{sT2}
    s_lshr_b32 s{sN}, s{sT1}, 2
    s_mul_i32 s{sT0}, s{sW}, {MT_STRIDE}
    v_lshlrev_b32 v{vDA}, 4, v{vL}
    v_add_u32 v{vDA}, s{sT0}, v{vDA}
    s_mul_i32 s{sA}, s{sK}, {56 * 1024}
    s_lshl_b32 s{sMA}, s{sW}, 11
    v_lshrrev_b32 v{vT0}, 4, v{vL}
    s_and_b32 s{sT0}, s{sW}, 1
    s_lshl_b32 s{sT0}, s{sT0}, 2
    v_add_u32 v{vT1}, s{sT0}, v{vT0}
    v_lshlrev_b32 v{vT1}, 1, v{vT1}
    v_and_b32 v{vT2}, 15, v{vL}
    v_xor_b32 v{vT1}, v{vT1}, v{vT2}
    v_lshlrev_b32 v{vT1}, 4, v{vT1}
    v_lshl_add_u32 v{vDB}, v{vT0}, 11, v{vT1}
    s_lshl_b32 s{sT0}, s{sN}, 8
    v_add_u32 v{vDB}, s{sT0}, v{vDB}
    s_lshr_b32 s{sT0}, s{sW}, 2            ; ks
    s_and_b32 s{sT1}, s{sW}, 3             ; g
    s_mul_i32 s{sT2}, s{sK}, 1792
    s_mul_i32 s{sLo}, s{sT0}, 56
    s_lshl_b32 s{sLo3}, s{sT1}, 2
    s_add_u32 s{sLo}, s{sLo}, s{sLo3}
    s_add_u32 s{sLo}, s{sLo}, s{sT2}
    s_lshl_b32 s{sLo}, s{sLo}, 11
    s_mul_i32 s{sLo2}, s{sT0}, 112
    s_lshr_b32 s{sLo3}, s{sT1}, 1
    s_mul_i32 s{sLo3}, s{sLo3}, 56
    s_add_u32 s{sLo2}, s{sLo2}, s{sLo3}
    s_and_b32 s{sLo3}, s{sT1}, 1
    s_lshl_b32 s{sLo3}, s{sLo3}, 3
    s_add_u32 s{sLo2}, s{sLo2}, s{sLo3}
    s_add_u32 s{sLo2}, s{sLo2}, s{sT2}
    s_add_u32 s{sLo2}, s{sLo2}, 32
    s_lshl_b32 s{sLo2}, s{sLo2}, 11
    s_mul_i32 s{sLo3}, s{sT0}, 224
    s_mul_i32 s{sT1}, s{sT1}, 56
    s_add_u32 s{sLo3}, s{sLo3}, s{sT1}
    s_add_u32 s{sLo3}, s{sLo3}, s{sT2}
    s_add_u32 s{sLo3}, s{sLo3}, 48
    s_lshl_b32 s{sLo3}, s{sLo3}, 11
    s_mov_b32 s{sHiD}, {16 * 2048 - 1024}
    s_mov_b32 s{sStep}, {112 * 2048}
    s_lshl_b32 s48, s{sM}, 3
    s_add_u32 s48, s48, s{sN}
    s_lshl_b32 s48, s48, 7
    s_add_u32 s48, s48, {hex(WS_FL)}
    s_lshl_b32 s{sTk}, s{sW}, 1
    s_sub_u32 s{sTk}, s{sMode}, s{sTk}
    v_mov_b32 v{vTk}, 1
    v_lshlrev_b32 v{vTk+1}, 8, v{vL}
    s_mul_i32 s{sT0}, s{sM}, {8 * MT_STRIDE}
    s_add_u32 s{sT0}, s{sT0}, {hex(WS_H)}
    s_waitcnt lgkmcnt(0)
    ''')
    srd(a, SH, 36, 37, f's{sT0}', 8 * MT_STRIDE)
    srd(a, SD, 32, 33, 0, 3584 * 1024 * 2)
    srd(a, SF, 36, 37, 's48', 128)
    a(f'''
    s_cmp_eq_u32 s{sTk}, 1
    s_cbranch_scc0 {base}_noticket
    buffer_atomic_add v{vTk}, v{vTk+1}, s[{SF}:{SF+3}], 0 offen sc0 sc1
    ''')
    a.label(f'{base}_noticket')

    def dma_ops(slot):
        b = slot * G2_ST
        return [
            [f's_add_u32 m0, s{sMA}, {b}', f'buffer_load_dwordx4 v{vDA}, s[{SH}:{SH+3}], s{sA} offen lds'],
            [f'buffer_load_dwordx4 v{vDA}, s[{SH}:{SH+3}], s{sA} offen offset:1024 lds', f's_add_u32 s{sA}, s{sA}, 2048'],
            [f's_add_u32 m0, s{sMA}, {b + 16384}', f's_add_u32 s{sHi}, s{sLo}, s{sHiD}',
             f'buffer_load_dwordx4 v{vDB}, s[{SD}:{SD+3}], s{sLo} offen lds'],
            [f'buffer_load_dwordx4 v{vDB}, s[{SD}:{SD+3}], s{sHi} offen offset:1024 lds', f's_add_u32 s{sLo}, s{sLo}, s{sStep}'],
        ]

    def emit(groups):
        for g in groups:
            for ins in g:
                a(ins)

    emit(dma_ops(0))
    a(f'''
    s_lshr_b32 s{sT0}, s{sW}, 2
    s_bfe_u32 s{sT1}, s{sW}, 0x10001
    s_lshl_b32 s{sT1}, s{sT1}, 13
    s_lshl_b32 s{sT2}, s{sT0}, 10
    s_add_u32 s{sT1}, s{sT1}, s{sT2}
    v_lshlrev_b32 v{vH[0]}, 4, v{vL}
    v_add_u32 v{vH[0]}, s{sT1}, v{vH[0]}
    s_lshl_b32 s{sT2}, s{sT0}, 12
    v_xor_b32 v{vH[0]}, s{sT2}, v{vH[0]}
    v_add_u32 v{vH[1]}, {2 * G2_ST}, v{vH[0]}
    v_xor_b32 v{vH2[0]}, 4096, v{vH[0]}
    v_xor_b32 v{vH2[1]}, 4096, v{vH[1]}
    v_lshrrev_b32 v{vT0}, 4, v{vL}
    v_bfe_u32 v{vT1}, v{vL}, 2, 2
    v_lshlrev_b32 v{vT2}, 11, v{vT0}
    v_lshl_add_u32 v{vT2}, v{vT1}, 8, v{vT2}
    v_and_b32 v{vT3}, 3, v{vL}
    v_lshl_add_u32 v{vT2}, v{vT3}, 3, v{vT2}
    s_lshl_b32 s{sT2}, s{sT0}, 13
    s_add_u32 s{sT2}, s{sT2}, 16384
    v_add_u32 v{vT2}, s{sT2}, v{vT2}
    v_and_b32 v{vT0}, 1, v{vT0}
    v_lshl_add_u32 v{vT1}, v{vT0}, 2, v{vT1}
    s_and_b32 s{sT2}, s{sW}, 1
    s_lshl_b32 s{sT2}, s{sT2}, 2
    v_xor_b32 v{vT1}, s{sT2}, v{vT1}
    ''')
    for t in range(4):
        a(f'v_xor_b32 v{vT0}, {t}, v{vT1}')
        a(f'v_lshl_add_u32 v{vWt[0][t]}, v{vT0}, 5, v{vT2}')
        a(f'v_add_u32 v{vWt[1][t]}, {2 * G2_ST}, v{vWt[0][t]}')
    emit(dma_ops(1))

    def read_ops(slot, p):
        hi, b = slot >> 1, (slot & 1) * G2_ST
        xs = [f'ds_read_b128 {vr(HF[p] + 4*q, 4)}, v{vH[hi] if q < 2 else vH2[hi]} offset:{b + (q & 1) * 2048}' for q in range(4)]
        ws = [f'ds_read_b64_tr_b16 {vr(WF[p] + 4*t + 2*jj, 2)}, v{vWt[hi][t]} offset:{b + jj * 1024}' for t in range(4) for jj in range(2)]
        return ws[:2] + xs + ws[2:]

    def mfmas(p, first=False):
        out = []
        for t in range(4):
            for q in (range(4) if t & 1 == 0 else (3, 2, 1, 0)):
                c = '0' if first else vr(acc(q, t), 4)
                out.append(f'v_mfma_f32_16x16x32_bf16 {vr(acc(q, t), 4)}, {vr(WF[p] + 4*t, 4)}, {vr(HF[p] + 4*q, 4)}, {c}')
        return out

    a(f'''
    s_waitcnt vmcnt(4)
    s_cmp_eq_u32 s{sTk}, 1
    s_cbranch_scc0 {base}_norole
    v_mov_b32 v{vTk+1}, {G2_ROLE}
    s_mov_b64 exec, 1
    ds_write_b32 v{vTk+1}, v{vTk}
    s_mov_b64 exec, -1
    s_waitcnt lgkmcnt(0)
    ''')
    a.label(f'{base}_norole')
    a('s_barrier')
    for ins in read_ops(0, 0):
        a(ins)
    if stamp:
        a('s_memtime s[54:55]')
    a('s_waitcnt lgkmcnt(0)')
    mf = mfmas(0, True)
    dm = dma_ops(2) + dma_ops(3)
    for i in range(8):
        a(mf[i])
        emit([dm[i]])
    a('s_waitcnt vmcnt(8)')
    a('s_barrier')
    rds, dm = read_ops(1, 1), dma_ops(0)
    for i in range(8, 16):
        a(mf[i])
        a(rds.pop(0))
        if i & 1:
            emit([dm.pop(0)])
        else:
            a(rds.pop(0))
    assert not rds and not dm

    def step(u, dma, wait, reads, extra=()):
        p = u & 1
        a(f's_waitcnt vmcnt({wait}) lgkmcnt(0)')
        if reads:
            a('s_barrier')
        rds = read_ops((u + 1) & 3, p ^ 1) if reads else []
        dms = dma_ops(u) if dma else []
        extra = list(extra)
        for i, m in enumerate(mfmas(p)):
            a(m)
            if dms and i in dma_at:
                emit([dms.pop(0)])
            if rds and i < 12:
                a(rds.pop(0))
            if extra and i & 1:
                a(extra.pop(0))
        assert not rds and not dms and not extra

    a(f's_mov_b32 s{sIt}, 0')
    a.raw('.p2align 6')
    a.label(f'{base}_loop')
    step(1, True, 8, True)
    step(2, True, 8, True)
    step(3, True, 8, True)
    for (it, lo, stp) in [(2, sLo2, 224), (4, sLo3, 448)]:
        a(f's_cmp_eq_u32 s{sIt}, {it}')
        a(f's_cselect_b32 s{sLo}, s{lo}, s{sLo}')
        a(f's_cselect_b32 s{sHiD}, {4 * 2048 - 1024}, s{sHiD}')
        a(f's_cselect_b32 s{sStep}, {stp * 2048}, s{sStep}')
    a(f's_cmp_eq_u32 s{sIt}, 5')
    a(f's_cselect_b32 s{sLo}, 0x40000000, s{sLo}')
    a(f's_cselect_b32 s{sA}, 0x40000000, s{sA}')
    step(0, True, 8, True)
    a(f's_add_u32 s{sIt}, s{sIt}, 1')
    a(f's_cmp_lg_u32 s{sIt}, 6')
    a(f's_cbranch_scc1 {base}_loop')
    pre = f'''s_lshr_b32 s{sT0}, s{sM}, 1
    s_lshl_b32 s{sT0}, s{sT0}, 8
    s_lshl_b32 s{sT1}, s{sM}, 2
    s_bfe_u32 s{sT2}, s{sW}, 0x10001
    s_lshl_b32 s{sT2}, s{sT2}, 1
    s_add_u32 s{sT1}, s{sT1}, s{sT2}
    v_mov_b32 v{vTk+1}, {G2_ROLE}
    ds_read_b32 v{vTk}, v{vTk+1}'''.split('\n')
    pre2 = f'''s_lshr_b32 s{sT2}, s{sW}, 2
    s_add_u32 s{sT1}, s{sT1}, s{sT2}
    s_and_b32 s{sT1}, s{sT1}, 7
    s_add_u32 s{sT0}, s{sT0}, s{sT1}
    s_lshl_b32 s{sT0}, s{sT0}, 11
    s_lshl_b32 s{sT1}, s{sN}, 8
    s_add_u32 s{sT0}, s{sT0}, s{sT1}
    v_readfirstlane_b32 s{sRole}, v{vTk}'''.split('\n')
    step(1, False, 8, True, extra=pre)
    step(2, False, 0, True, extra=pre2)
    a(f'''
    s_and_b32 s{sT1}, s{sW}, 1
    s_lshl_b32 s{sT1}, s{sT1}, 7
    s_add_u32 s{sT0}, s{sT0}, s{sT1}
    v_and_b32 v{vT0}, 15, v{vL}
    v_lshlrev_b32 v{vO}, 14, v{vT0}
    v_bfe_u32 v{vT0}, v{vL}, 4, 1
    v_lshl_add_u32 v{vO}, v{vT0}, 5, v{vO}
    v_lshrrev_b32 v{vT0}, 5, v{vL}
    v_lshl_add_u32 v{vO}, v{vT0}, 4, v{vO}
    v_add_u32 v{vO}, s{sT0}, v{vO}
    s_xor_b32 s{sT1}, s{sK}, 1
    s_and_b32 s{sRole}, s{sRole}, 1
    s_cmp_eq_u32 s{sMode}, 0
    s_cselect_b32 s{sRole}, s{sT1}, s{sRole}
    s_add_u32 s40, s36, {hex(WS_P)}
    s_addc_u32 s41, s37, 0
    s_cmp_eq_u32 s{sMode}, 0
    s_cselect_b32 s34, s40, s34
    s_cselect_b32 s35, s41, s35
    s_add_u32 s40, s36, {hex(WS_P + (4 << 20))}
    s_addc_u32 s41, s37, 0
    s_cmp_eq_u32 s{sRole}, 0
    s_cselect_b32 s34, s40, s34
    s_cselect_b32 s35, s41, s35
    ''')
    srd(a, SO, 34, 35, 0, 4 << 20)
    srd(a, SR, 36, 37, WS_X1, 4 << 20)
    srd(a, SH, 40, 41, 0, 4 << 20)
    a(f's_lshl_b32 s{SR+2}, s{sRole}, 22')
    a(f's_mov_b32 s{sT1}, {128 * 2048}')
    res = [f'buffer_load_dwordx4 {vr(vRes + 8*q + 4*tp, 4)}, v{vO}, s[{SR}:{SR+3}], {"0" if q == 0 else f"s{sT1}"} offen offset:{64*tp}'
           for q in range(2) for tp in range(2)]
    step(3, False, 63, False, extra=res)
    if stamp:
        a('s_memtime s[56:57]')
    a(f'''
    s_lshl_b32 s{sT0}, s{sW}, 13
    v_lshlrev_b32 v{vT0}, 4, v{vL}
    v_add_u32 v{vT0}, s{sT0}, v{vT0}
    v_xor_b32 v{vT1}, {4 << 13}, v{vT0}
    ''')
    for i in range(8):
        a(f'ds_write_b128 v{vT0}, {vr(32 + 4*i, 4)} offset:{i * 1024}')
    a('s_waitcnt lgkmcnt(0)')
    a('s_barrier')
    for i in range(8):
        a(f'ds_read_b128 {vr(64 + 4*i, 4)}, v{vT1} offset:{i * 1024}')
    a(f'''
    s_and_b32 s{sT0}, s{sMode}, s{sRole}
    s_cmp_eq_u32 s{sT0}, 1
    s_cbranch_scc0 {base}_nowait
    s_lshl_b32 s{sT2}, s{sW}, 2
    s_add_u32 s{sT2}, s{sT2}, 64
    v_mov_b32 v{vTk+1}, s{sT2}
    s_mov_b32 s{sIt}, 0x200000
    ''')
    a.label(f'{base}_poll')
    a(f'''
    buffer_load_dword v{vTk}, v{vTk+1}, s[{SF}:{SF+3}], 0 offen sc1
    s_sub_u32 s{sIt}, s{sIt}, 1
    s_waitcnt vmcnt(0)
    v_readfirstlane_b32 s{sT2}, v{vTk}
    s_cmp_eq_u32 s{sIt}, 0
    s_cselect_b32 s{sT2}, 1, s{sT2}
    s_cmp_eq_u32 s{sT2}, 0
    s_cbranch_scc1 {base}_poll
    ''')
    for q in range(2):
        for tp in range(2):
            a(f'buffer_load_dwordx4 {vr(32 + 8*q + 4*tp, 4)}, v{vO}, s[{SH}:{SH+3}], {"0" if q == 0 else f"s{sT1}"} offen offset:{64*tp} sc1')
    a(f's_branch {base}_sum')
    a.label(f'{base}_nowait')
    for i in range(16):
        a(f'v_mov_b32 v{32 + i}, 0')
    a.label(f'{base}_sum')
    for q in range(2):
        for tp in range(2):
            i0 = q * 4 + tp * 2
            a(f's_waitcnt lgkmcnt({6 - i0})')
            for h in range(0, 8, 2):
                a(f'v_pk_add_f32 {vr(4*i0 + h, 2)}, {vr(4*i0 + h, 2)}, {vr(64 + 4*i0 + h, 2)}')
            for r in range(4):
                a(f'v_permlane16_swap_b32 v{4*i0 + r}, v{4*i0 + 4 + r}')
    a(f's_cmp_eq_u32 s{sT0}, 1')
    a(f's_cbranch_scc0 {base}_noround')
    for c in range(16):
        a(f'v_cvt_pk_bf16_f32 v{96 + c}, v{2*c}, v{2*c + 1}')
    for c in range(16):
        a(f'v_lshlrev_b32 v{2*c}, 16, v{96 + c}')
        a(f'v_and_b32 v{2*c + 1}, 0xffff0000, v{96 + c}')
    a.label(f'{base}_noround')
    a('s_waitcnt vmcnt(0)')
    for q in range(2):
        for tp in range(2):
            i0 = q * 4 + tp * 2
            P = 96 + 4 * (q * 2 + tp)
            for R in (32 + 8 * q + 4 * tp, vRes + 8 * q + 4 * tp):
                for c in range(4):
                    a(f'v_lshlrev_b32 v{112 + 2*c}, 16, v{R + c}')
                    a(f'v_and_b32 v{113 + 2*c}, 0xffff0000, v{R + c}')
                for c in range(4):
                    a(f'v_pk_add_f32 {vr(4*i0 + 2*c, 2)}, {vr(112 + 2*c, 2)}, {vr(4*i0 + 2*c, 2)}')
            for c in range(4):
                a(f'v_cvt_pk_bf16_f32 v{P + c}, v{4*i0 + 2*c}, v{4*i0 + 2*c + 1}')
            a(f'buffer_store_dwordx4 {vr(P, 4)}, v{vO}, s[{SO}:{SO+3}], {"0" if q == 0 else f"s{sT1}"} offen offset:{64*tp}{st_flags}')
    a(f'''
    s_cmp_gt_u32 s{sMode}, s{sRole}
    s_cbranch_scc0 {base}_done
    s_lshl_b32 s{sT2}, s{sW}, 2
    s_add_u32 s{sT2}, s{sT2}, 64
    v_lshlrev_b32 v{vTk+1}, 8, v{vL}
    v_add_u32 v{vTk+1}, s{sT2}, v{vTk+1}
    v_mov_b32 v{vTk}, 1
    s_waitcnt vmcnt(0)
    buffer_store_dword v{vTk}, v{vTk+1}, s[{SF}:{SF+3}], 0 offen sc1
    ''')
    a.label(f'{base}_done')
    if stamp:
        stamp_out(a, sW, 36)
    a.label(f'{base}_end')
    a('s_endpgm')
    return (''.join(descriptor(n, 168, 72, 168) for n in names), [(n, 256, 512, G2F_LDS) for n in names])
```

```python
from gen_common import *

EPS = 1e-5
WB = 1024 * 3584 * 2


def sincos(a, dc, ds, fv, k, base, tmp):
    if base is None:
        a(f'v_mul_f32 v{tmp}, {f32hex(k)}, v{fv}')
    elif k == 0:
        tmp = base
    else:
        a(f'v_fmamk_f32 v{tmp}, v{fv}, {f32hex(k)}, v{base}')
    a(f'v_cos_f32 v{dc}, v{tmp}')
    a(f'v_sin_f32 v{ds}, v{tmp}')


def wave_reduce(a, regs, sdst):
    for m in ('row_shr:1', 'row_shr:2', 'row_shr:4', 'row_shr:8'):
        for r in regs:
            a(f'v_add_f32_dpp v{r}, v{r}, v{r} {m} row_mask:0xf bank_mask:0xf')
    for r in regs:
        a(f'v_add_f32_dpp v{r}, v{r}, v{r} row_bcast:15 row_mask:0xa bank_mask:0xf')
    for r in regs:
        a(f'v_add_f32_dpp v{r}, v{r}, v{r} row_bcast:31 row_mask:0xc bank_mask:0xf')
    for r, s in zip(regs, sdst):
        a(f'v_readlane_b32 s{s}, v{r}, 63')


PF_WGS = 256


def prefetch_role(a, label, endlabel, items):
    a.label(label)
    a(f's_cmp_ge_u32 s2, {256 + PF_WGS}')
    a(f's_cbranch_scc1 {endlabel}')
    for i, (ka, st, n) in enumerate(items):
        a(f's_load_dwordx2 s[{40 + 2*i}:{41 + 2*i}], s[0:1], {ka}')
    a(f's_sub_u32 s20, s2, 256')
    a(f's_lshl_b32 s20, s20, 12')
    a(f'v_lshlrev_b32 v1, 4, v0')
    a(f'v_add_u32 v1, s20, v1')
    a('s_waitcnt lgkmcnt(0)')
    r = 4
    for i, (ka, st, n) in enumerate(items):
        srd(a, 4, 40 + 2 * i, 41 + 2 * i, st, n)
        chunk = PF_WGS * 4096
        for c in range(-(-n // chunk)):
            a(f's_mov_b32 s21, {c * chunk}')
            a(f'buffer_load_dwordx4 {vr(r, 4)}, v1, s[4:7], s21 offen')
            r += 4
    a(f's_branch {endlabel}')


def entries(a, names, stamp):
    base = names[0][:-8]
    for li, name in enumerate(names):
        kernel_start(a, name)
        if stamp:
            a('s_memtime s[50:51]\ns_memrealtime s[52:53]')
        a(f's_load_dwordx2 s[36:37], s[0:1], {KA_WS}')
        a(f's_mov_b32 s38, {li}')
        if li == 0:
            a(f's_load_dwordx2 s[32:33], s[0:1], {KA_X}')
            a('s_waitcnt lgkmcnt(0)')
            a(f's_branch {base}_body')
        else:
            a('s_waitcnt lgkmcnt(0)')
            a(f's_add_u32 s32, s36, {hex(WS_X2)}')
            a(f's_addc_u32 s33, s37, 0')
    a.label(f'{base}_body')
    return base


def z_voffset(a, dst, vL, sW, t0, t1, sT0, sT1):
    a(f'''
    v_bfe_u32 v{t0}, v{vL}, 2, 2
    v_lshrrev_b32 v{t1}, 4, v{vL}
    v_lshlrev_b32 v{t0}, 17, v{t0}
    v_lshl_add_u32 v{t0}, v{t1}, 15, v{t0}
    v_and_b32 v{t1}, 3, v{vL}
    v_lshl_add_u32 v{dst}, v{t1}, 4, v{t0}
    s_and_b32 s{sT0}, s2, 7
    s_lshl_b32 s{sT0}, s{sT0}, 5
    s_lshr_b32 s{sT1}, s2, 3
    s_add_u32 s{sT0}, s{sT0}, s{sT1}
    s_lshl_b32 s{sT0}, s{sT0}, 6
    s_lshl_b32 s{sT1}, s{sW}, 20
    s_add_u32 s{sT0}, s{sT0}, s{sT1}
    v_add_u32 v{dst}, s{sT0}, v{dst}
    ''')


def radix8_const(a, dst, vL, t, sign, scale=None):
    t0, t1, t2, t3, t4 = t, t + 1, t + 2, t + 3, t + 4
    a(f'''
    v_bfe_u32 v{t0}, v{vL}, 1, 3
    v_lshrrev_b32 v{t1}, 4, v{vL}
    v_lshlrev_b32 v{t1}, 1, v{t1}
    v_and_b32 v{t2}, 1, v{vL}
    v_cvt_f32_u32 v{t2}, v{t2}
    v_mul_f32 v{t2}, 0.25, v{t2}
    ''')
    for e in range(2):
        if sign < 0:
            a(f'v_add_u32 v{t3}, {e}, v{t1}')
            a(f'v_lshl_add_u32 v{t3}, v{t3}, 8, s2')
            a(f'v_mul_u32_u24 v{t3}, v{t3}, v{t0}')
        else:
            a(f'v_add_u32 v{t4}, {e}, v{t1}')
            a(f'v_lshl_add_u32 v{t3}, v{t0}, 8, s2')
            a(f'v_mul_u32_u24 v{t3}, v{t3}, v{t4}')
        a(f'v_and_b32 v{t3}, 2047, v{t3}')
        a(f'v_cvt_f32_u32 v{t3}, v{t3}')
        a(f'v_fmamk_f32 v{t3}, v{t3}, {f32hex(-sign / 2048.0)}, v{t2}')
        a(f'v_cos_f32 v{t4}, v{t3}')
        a(f'v_sin_f32 v{t3}, v{t3}')
        if scale:
            a(f'v_mul_f32 v{t4}, {f32hex(scale)}, v{t4}')
            a(f'v_mul_f32 v{t3}, {f32hex(scale)}, v{t3}')
        a(f'v_cvt_pk_bf16_f32 v{dst + e}, v{t4}, v{t3}')


def ln_stats(a, X, ST, s_out):
    a(f'v_pk_add_f32 {vr(ST,2)}, {vr(X,2)}, {vr(X+2,2)}')
    a(f'v_pk_mul_f32 {vr(ST+2,2)}, {vr(X,2)}, {vr(X,2)}')
    for i in range(1, 8):
        if i > 1:
            a(f'v_pk_add_f32 {vr(ST,2)}, {vr(ST,2)}, {vr(X+2*i,2)}')
        a(f'v_pk_fma_f32 {vr(ST+2,2)}, {vr(X+2*i,2)}, {vr(X+2*i,2)}, {vr(ST+2,2)}')
    a(f'v_add_f32 v{ST+2}, v{ST+2}, v{ST+3}')


def ln_finish(a, s_se, s_so, s_sq, R):
    a(f'''
    v_mov_b32 v{R+2}, s{s_se}
    v_add_f32 v{R+2}, s{s_so}, v{R+2}
    v_mul_f32 v{R+2}, {f32hex(-1.0/1024)}, v{R+2}
    v_mov_b32 v{R+1}, {f32hex(EPS)}
    v_mov_b32 v{R}, s{s_sq}
    v_fmamk_f32 v{R}, v{R}, {f32hex(1.0/1024)}, v{R+1}
    v_fma_f32 v{R}, -v{R+2}, v{R+2}, v{R}
    v_max_f32 v{R}, v{R}, v{R+1}
    v_rsq_f32 v{R}, v{R}
    v_mul_f32 v{R+2}, v{R+2}, v{R}
    ''')


P1_E = 16384
P1_ES = 4096 + 128
P1_LDS = P1_E + 4 * P1_ES


def gen_p1(a, names=('p1a_kernel', 'p1b_kernel'), stamp=False):
    SX, SZ = 4, 8
    sW, sT0, sT1 = 20, 21, 22
    vL, vT = 0, 1
    RAW = 8
    C1, NS1, TWC, TWS, C2, R8 = 24, 32, 40, 56, 72, 88
    XF = 90
    ST = 122
    AOP = 8
    vZ, vLW, vLR, vEW, vER = 130, 131, 132, 133, 134
    D2 = 136
    PK = 168
    base = entries(a, names, stamp)
    a(f'''
    s_cmp_ge_u32 s2, 256
    s_cbranch_scc1 {base}_pf
    v_lshrrev_b32 v1, 6, v0
    v_and_b32 v{vL}, 63, v0
    v_readfirstlane_b32 s{sW}, v1
    v_lshlrev_b32 v2, 4, v{vL}
    s_add_u32 s40, s36, {hex(WS_X1)}
    s_addc_u32 s41, s37, 0
    s_cmp_eq_u32 s38, 0
    s_cselect_b32 s40, s32, s40
    s_cselect_b32 s41, s33, s41
    ''')
    srd(a, SX, 40, 41, 0, 4 << 20)
    a(f'''
    s_lshl_b32 s{sT0}, s{sW}, 9
    s_add_u32 s{sT0}, s{sT0}, s2
    s_lshl_b32 s{sT0}, s{sT0}, 11
    s_add_u32 s{sT1}, s{sT0}, {256 * 2048}
    buffer_load_dwordx4 {vr(RAW,4)}, v2, s[{SX}:{SX+3}], s{sT0} offen
    buffer_load_dwordx4 {vr(RAW+4,4)}, v2, s[{SX}:{SX+3}], s{sT0} offen offset:1024
    buffer_load_dwordx4 {vr(RAW+8,4)}, v2, s[{SX}:{SX+3}], s{sT1} offen
    buffer_load_dwordx4 {vr(RAW+12,4)}, v2, s[{SX}:{SX+3}], s{sT1} offen offset:1024
    s_mov_b32 s42, s{sT0}
    s_mov_b32 s43, s{sT1}
    v_mov_b32 v135, v2
    s_cmp_eq_u32 s38, 0
    s_cbranch_scc1 {base}_nopart
    ''')
    srd(a, 12, 36, 37, WS_P, 8 << 20)
    srd(a, 16, 32, 33, 0, 4 << 20)
    for k in range(2):
        for e in range(2):
            a(f's_add_u32 s44, s{42 + e}, {k << 22}')
            a(f'buffer_load_dwordx4 {vr(184 + 16*k + 8*e, 4)}, v2, s[12:15], s44 offen')
            a(f'buffer_load_dwordx4 {vr(188 + 16*k + 8*e, 4)}, v2, s[12:15], s44 offen offset:1024')
    a.label(f'{base}_nopart')
    srd(a, SZ, 36, 37, WS_Z, 4 << 20)
    a(f'''
    s_lshl_b32 s{sT0}, s{sW}, 12
    v_add_u32 v{vLW}, s{sT0}, v2
    v_lshrrev_b32 v3, 5, v{vL}
    v_bfe_u32 v4, v{vL}, 2, 2
    v_lshl_add_u32 v3, v3, 3, v4
    v_lshlrev_b32 v3, 6, v3
    v_bfe_u32 v4, v{vL}, 4, 1
    v_lshl_add_u32 v3, v4, 5, v3
    v_and_b32 v4, 3, v{vL}
    v_lshl_add_u32 v3, v4, 3, v3
    v_add_u32 v{vLR}, s{sT0}, v3
    s_mul_i32 s{sT0}, s{sW}, {P1_ES}
    s_add_u32 s{sT0}, s{sT0}, {P1_E}
    v_and_b32 v3, 31, v{vL}
    v_lshrrev_b32 v4, 5, v{vL}
    v_lshl_add_u32 v3, v4, 6, v3
    v_lshlrev_b32 v3, 3, v3
    v_add_u32 v{vEW}, s{sT0}, v3
    v_lshrrev_b32 v3, 4, v{vL}
    v_mul_u32_u24 v3, {P1_ES}, v3
    v_and_b32 v4, 15, v{vL}
    v_lshl_add_u32 v3, v4, 5, v3
    s_lshl_b32 s{sT0}, s{sW}, 10
    s_add_u32 s{sT0}, s{sT0}, {P1_E}
    v_add_u32 v{vER}, s{sT0}, v3
    ''')
    z_voffset(a, vZ, vL, sW, 3, 4, sT0, sT1)
    a(f'''
    v_and_b32 v1, 31, v{vL}
    v_cvt_f32_u32 v1, v1
    v_lshrrev_b32 v2, 5, v{vL}
    v_cvt_f32_u32 v2, v2
    v_mul_f32 v3, v1, v2
    v_mul_f32 v4, 0.25, v3
    ''')
    for q in range(2):
        for u in range(4):
            for e in range(2):
                sincos(a, XF + e, XF + 2 + e, 1, (16 * q + 2 * u + e) / 32.0, 4, 5)
            a(f'v_cvt_pk_bf16_f32 v{C1 + 4*q + u}, v{XF}, v{XF+1}')
            a(f'v_cvt_pk_bf16_f32 v{NS1 + 4*q + u}, -v{XF+2}, -v{XF+3}')
    a(f'v_mul_f32 v4, {f32hex(4/1024.0)}, v3')
    for r in range(16):
        sincos(a, TWC + r, TWS + r, 1, ((r & 3) + 8 * (r >> 2)) / 1024.0, 4, 5)
    a(f'''
    v_bfe_u32 v1, v{vL}, 1, 4
    v_cvt_f32_u32 v1, v1
    v_mul_f32 v3, v1, v2
    v_and_b32 v4, 1, v{vL}
    v_cvt_f32_u32 v4, v4
    v_mul_f32 v4, 0.25, v4
    v_fmamk_f32 v4, v3, {f32hex(4/32.0)}, v4
    ''')
    for q in range(4):
        for u in range(4):
            sincos(a, XF, XF + 1, 1, (u + 8 * q) / 32.0, 4, 5)
            a(f'v_cvt_pk_bf16_f32 v{C2 + 4*q + u}, v{XF}, v{XF+1}')
    radix8_const(a, R8, vL, 1, -1)
    if stamp:
        a('s_memtime s[54:55]')
    a(f'''
    s_cmp_eq_u32 s38, 0
    s_cbranch_scc1 {base}_nosum
    s_waitcnt vmcnt(0)
    ''')
    for e in range(2):
        for c in range(8):
            for (d, sreg) in ((XF, RAW + 8*e + c), (XF + 2, 184 + 8*e + c), (XF + 4, 200 + 8*e + c)):
                d += 6 * (c & 1)
                a(f'v_lshlrev_b32 v{d}, 16, v{sreg}')
                a(f'v_and_b32 v{d + 1}, 0xffff0000, v{sreg}')
            d = XF + 6 * (c & 1)
            a(f'v_pk_add_f32 {vr(d + 2, 2)}, {vr(d + 2, 2)}, {vr(d + 4, 2)}')
            a(f'v_pk_add_f32 {vr(d, 2)}, {vr(d, 2)}, {vr(d + 2, 2)}')
            a(f'v_cvt_pk_bf16_f32 v{RAW + 8*e + c}, v{d}, v{d + 1}')
        a(f'buffer_store_dwordx4 {vr(RAW + 8*e, 4)}, v135, s[16:19], s{42 + e} offen')
        a(f'buffer_store_dwordx4 {vr(RAW + 8*e + 4, 4)}, v135, s[16:19], s{42 + e} offen offset:1024')
    a(f's_branch {base}_ln')
    a.label(f'{base}_nosum')
    a('s_waitcnt vmcnt(0)')
    a.label(f'{base}_ln')
    for e in range(2):
        for c in range(8):
            a(f'v_lshlrev_b32 v{XF + 16*e + 2*c}, 16, v{RAW + 8*e + c}')
            a(f'v_and_b32 v{XF + 16*e + 2*c + 1}, 0xffff0000, v{RAW + 8*e + c}')
        ln_stats(a, XF + 16 * e, ST + 4 * e, None)
    wave_reduce(a, [ST, ST + 1, ST + 2, ST + 4, ST + 5, ST + 6], [24, 25, 26, 27, 28, 29])
    for e in range(2):
        ln_finish(a, 24 + 3 * e, 25 + 3 * e, 26 + 3 * e, ST + 4 * e)
    for e in range(2):
        R = ST + 4 * e
        for c in range(8):
            a(f'v_pk_fma_f32 {vr(XF + 16*e + 2*c, 2)}, {vr(XF + 16*e + 2*c, 2)}, {vr(R,2)}, {vr(R+2,2)} op_sel_hi:[1,0,0]')
        for c in range(8):
            a(f'v_cvt_pk_bf16_f32 v{RAW + 8*e + c}, v{XF + 16*e + 2*c}, v{XF + 16*e + 2*c + 1}')
        a(f'ds_write_b128 v{vLW}, {vr(RAW + 8*e, 4)} offset:{2048*e}')
        a(f'ds_write_b128 v{vLW}, {vr(RAW + 8*e + 4, 4)} offset:{2048*e + 1024}')
        a(f'v_mov_b32 v{R+1}, s{24 + 3*e}')
        a(f'v_subrev_f32 v{R+1}, s{25 + 3*e}, v{R+1}')
        a(f'v_mul_f32 v{R+1}, v{R+1}, v{R}')
    a('s_waitcnt lgkmcnt(0)')
    for e in range(2):
        for q in range(2):
            for jj in range(2):
                a(f'ds_read_b64_tr_b16 {vr(AOP + 8*e + 4*q + 2*jj, 2)}, v{vLR} offset:{2048*e + (16*q + 4*jj) * 64}')
    for e in range(2):
        a(f's_waitcnt lgkmcnt({4 - 4*e})')
        DR, DI = XF, XF + 16
        if e == 1:
            DR, DI = 184, 200
        for q in range(2):
            c = '0' if q == 0 else vr(DR, 16)
            a(f'v_mfma_f32_32x32x16_bf16 {vr(DR,16)}, {vr(AOP + 8*e + 4*q, 4)}, {vr(C1 + 4*q, 4)}, {c}')
        for q in range(2):
            c = '0' if q == 0 else vr(DI, 16)
            a(f'v_mfma_f32_32x32x16_bf16 {vr(DI,16)}, {vr(AOP + 8*e + 4*q, 4)}, {vr(NS1 + 4*q, 4)}, {c}')
    for e in range(2):
        DR, DI = (XF, XF + 16) if e == 0 else (184, 200)
        P = PK if e == 0 else 216
        for r0 in range(0, 16, 4):
            for r in range(r0, r0 + 4):
                a(f'v_mul_f32 v{1 + (r & 3)}, v{DR + r}, v{TWC + r}')
                a(f'v_mul_f32 v{232 + (r & 3)}, v{DI + r}, v{TWC + r}')
            for r in range(r0, r0 + 4):
                a(f'v_fmac_f32 v{1 + (r & 3)}, v{DI + r}, v{TWS + r}')
                a(f'v_fma_f32 v{232 + (r & 3)}, -v{DR + r}, v{TWS + r}, v{232 + (r & 3)}')
            for r in range(r0, r0 + 4):
                a(f'v_cvt_pk_bf16_f32 v{P + r}, v{1 + (r & 3)}, v{232 + (r & 3)}')
        for q in range(4):
            c = '0' if q == 0 else vr(D2 + 16 * e, 16)
            a(f'v_mfma_f32_32x32x16_bf16 {vr(D2 + 16*e, 16)}, {vr(C2 + 4*q, 4)}, {vr(P + 4*q, 4)}, {c}')
    a('s_nop 7')
    a('s_mov_b64 exec, 1')
    for e in range(2):
        a(f'v_mov_b32 v{D2 + 16*e}, v{ST + 4*e + 1}')
    a('s_mov_b64 exec, -1')
    for p in range(8):
        for e in range(2):
            a(f'v_cvt_pk_bf16_f32 v{XF + 2*p + e}, v{D2 + 16*e + 2*p}, v{D2 + 16*e + 2*p + 1}')
        kb = (p & 1) + 4 * (p >> 1)
        a(f'ds_write_b64 v{vEW}, {vr(XF + 2*p, 2)} offset:{kb * 32 * 8}')
    a('s_waitcnt lgkmcnt(0)')
    a('s_barrier')
    for t in range(2):
        a(f'ds_read_b128 {vr(RAW + 8*t, 4)}, v{vER} offset:{t * 512}')
        a(f'ds_read_b128 {vr(RAW + 8*t + 4, 4)}, v{vER} offset:{t * 512 + 16}')
    for t in range(2):
        a(f's_waitcnt lgkmcnt({2 - 2*t})')
        for m in range(4):
            a(f'v_mfma_f32_16x16x16_bf16 {vr(D2 + 16*t + 4*m, 4)}, {vr(R8, 2)}, {vr(RAW + 8*t + 2*m, 2)}, 0')
    if stamp:
        a('s_memtime s[56:57]')
    for t in range(2):
        for m in range(4):
            a(f'v_cvt_pk_bf16_f32 v{PK + 8*t + m}, v{D2 + 16*t + 4*m}, v{D2 + 16*t + 4*m + 1}')
            a(f'v_cvt_pk_bf16_f32 v{PK + 8*t + 4 + m}, v{D2 + 16*t + 4*m + 2}, v{D2 + 16*t + 4*m + 3}')
        a(f's_mov_b32 s{sT0}, {t * 4 * 8 * 16384}')
        a(f's_mov_b32 s{sT1}, {t * 4 * 8 * 16384 + 16384}')
        a(f'buffer_store_dwordx4 {vr(PK + 8*t, 4)}, v{vZ}, s[{SZ}:{SZ+3}], s{sT0} offen')
        a(f'buffer_store_dwordx4 {vr(PK + 8*t + 4, 4)}, v{vZ}, s[{SZ}:{SZ+3}], s{sT1} offen')
    if stamp:
        stamp_out(a, sW, 36)
    a.label(f'{base}_end')
    a('s_endpgm')
    prefetch_role(a, f'{base}_pf', f'{base}_end', [(KA_WR, 0, 2048 * 513 * 2), (KA_WI, 0, 2048 * 513 * 2), (KA_WG, 0, 4 << 20)])
    return (''.join(descriptor(n, 240, 72, 240) for n in names), [(n, 256 + PF_WGS * (n == names[0]), 256, P1_LDS) for n in names])


def gen_p2(a, name='p2_kernel', stamp=False):
    SZ, SR, SI = 4, 8, 12
    sW, sT0, sT1, sK1, sCG = 20, 21, 22, 23, 24
    vL = 0
    RAW, WR, WI = 8, 24, 32
    FR, FI, IR, II = 40, 44, 48, 52
    TC, TS = 56, 60
    OP = 64
    DR, DI = 80, 96
    vZ, vW = 112, 116
    T1, T2 = 120, 124
    WF = 128
    kernel_start(a, name)
    if stamp:
        a('s_memtime s[50:51]\ns_memrealtime s[52:53]')
    a(f'''
    s_load_dwordx2 s[36:37], s[0:1], {KA_WS}
    s_load_dwordx4 s[32:35], s[0:1], {KA_WR}
    s_cmp_ge_u32 s2, 256
    s_cbranch_scc1 {name}_pf
    v_lshrrev_b32 v1, 6, v0
    v_and_b32 v{vL}, 63, v0
    v_readfirstlane_b32 s{sW}, v1
    s_and_b32 s{sK1}, s2, 7
    s_lshr_b32 s{sCG}, s2, 3
    v_and_b32 v1, 7, v{vL}
    v_lshlrev_b32 v1, 5, v1
    v_bfe_u32 v2, v{vL}, 3, 1
    v_add_u32 v1, v1, v2
    v_lshrrev_b32 v2, 4, v{vL}
    v_lshl_add_u32 v1, v2, 3, v1
    v_lshlrev_b32 v1, 6, v1
    s_lshl_b32 s{sT0}, s{sW}, 4
    v_add_u32 v{vZ}, s{sT0}, v1
    v_and_b32 v1, 15, v{vL}
    v_lshl_add_u32 v1, v2, 6, v1
    v_lshl_add_u32 v1, v1, 3, s{sK1}
    v_mul_u32_u24 v3, 1026, v1
    s_lshl_b32 s{sT0}, s{sCG}, 5
    s_lshl_b32 s{sT1}, s{sW}, 3
    s_add_u32 s{sT0}, s{sT0}, s{sT1}
    v_add_u32 v{vW}, s{sT0}, v3
    s_lshl_b32 s{sT0}, s2, 14
    s_add_u32 s{sT0}, s{sT0}, {WS_Z}
    s_waitcnt lgkmcnt(0)
    ''')
    srd(a, SZ, 36, 37, f's{sT0}', 16384)
    for u in range(4):
        a(f'buffer_load_dwordx4 {vr(RAW + 4*u, 4)}, v{vZ}, s[{SZ}:{SZ+3}], 0 offen offset:{u * 128}')
    srd(a, SR, 32, 33, 0, 2048 * 513 * 2)
    srd(a, SI, 34, 35, 0, 2048 * 513 * 2)
    for r in range(4):
        a(f's_mov_b32 s{sT0}, {r * 128 * 1026}')
        a(f'buffer_load_dwordx2 {vr(WR + 2*r, 2)}, v{vW}, s[{SR}:{SR+3}], s{sT0} offen')
        a(f'buffer_load_dwordx2 {vr(WI + 2*r, 2)}, v{vW}, s[{SI}:{SI+3}], s{sT0} offen')
    a(f'''
    s_or_b32 s{sT0}, s{sCG}, s{sW}
    s_cmp_eq_u32 s{sT0}, 0
    s_cbranch_scc0 {name}_nonyq
    ''')
    for r in range(4):
        a(f's_mov_b32 s{sT0}, {r * 128 * 1026}')
        a(f'buffer_load_ushort v{DR + r}, v{vW}, s[{SR}:{SR+3}], s{sT0} offen offset:1024')
        a(f'buffer_load_ushort v{DI + r}, v{vW}, s[{SI}:{SI+3}], s{sT0} offen offset:1024')
    a('s_waitcnt vmcnt(0)')
    a(f's_mov_b32 s{sT0}, 0xffff0000')
    for r in range(4):
        a(f'v_and_or_b32 v{WR + 2*r}, v{WR + 2*r}, s{sT0}, v{DR + r}')
        a(f'v_and_or_b32 v{WI + 2*r}, v{WI + 2*r}, s{sT0}, v{DI + r}')
    a.label(f'{name}_nonyq')
    a(f'''
    v_and_b32 v1, 15, v{vL}
    v_cvt_f32_u32 v1, v1
    v_cvt_f32_u32 v2, v2
    v_mul_f32 v3, v1, v2
    v_mul_f32 v4, 0.25, v3
    ''')
    for u in range(4):
        sincos(a, 6, 7, 1, u / 16.0, 4, 5)
        a(f'v_cvt_pk_bf16_f32 v{FR + u}, v6, v7')
        a(f'v_cvt_pk_bf16_f32 v{FI + u}, -v7, v6')
        a(f'v_cvt_pk_bf16_f32 v{IR + u}, v6, -v7')
        a(f'v_cvt_pk_bf16_f32 v{II + u}, v7, v6')
    a(f'v_mul_f32 v4, {f32hex(4 / 256.0)}, v3')
    for r in range(4):
        sincos(a, TC + r, TS + r, 1, r / 256.0, 4, 5)
    if stamp:
        a('s_memtime s[54:55]')
    a('s_waitcnt vmcnt(8)')
    for j in range(4):
        for u in range(4):
            a(f'v_mov_b32 v{OP + 4*j + u}, v{RAW + 4*u + j}')

    def stage(atype, cr, ci):
        for j in range(4):
            for (d, c) in ((DR, cr), (DI, ci)):
                if atype:
                    a(f'v_mfma_f32_16x16x32_bf16 {vr(d + 4*j, 4)}, {vr(OP + 4*j, 4)}, {vr(c, 4)}, 0')
                else:
                    a(f'v_mfma_f32_16x16x32_bf16 {vr(d + 4*j, 4)}, {vr(c, 4)}, {vr(OP + 4*j, 4)}, 0')

    def cmul(j, cs, ss, conj, dst):
        for r in range(4):
            a(f'v_mul_f32 v{T1 + r}, v{DR + 4*j + r}, v{cs(r)}')
            a(f'v_mul_f32 v{T2 + r}, v{DI + 4*j + r}, v{cs(r)}')
        for r in range(4):
            n1, n2 = ('-', '') if conj else ('', '-')
            a(f'v_fma_f32 v{T1 + r}, {n1}v{DI + 4*j + r}, v{ss(r)}, v{T1 + r}')
            a(f'v_fma_f32 v{T2 + r}, {n2}v{DR + 4*j + r}, v{ss(r)}, v{T2 + r}')
        for r in range(4):
            a(f'v_cvt_pk_bf16_f32 v{dst(r)}, v{T1 + r}, v{T2 + r}')

    stage(True, FR, FI)
    for j in range(4):
        cmul(j, lambda r: TC + r, lambda r: TS + r, False, lambda r: OP + 4 * j + r)
    stage(False, FR, FI)
    a('s_waitcnt vmcnt(0)')
    scale = 2.0 / (2048 * 1024)
    a(f's_mov_b32 s{sT0}, {f32hex(scale)}')
    for j in range(4):
        for r in range(4):
            for (w, o) in ((WR, 0), (WI, 4)):
                src = w + 2 * r + (j >> 1)
                if j & 1:
                    a(f'v_and_b32 v{WF + o + r}, 0xffff0000, v{src}')
                else:
                    a(f'v_lshlrev_b32 v{WF + o + r}, 16, v{src}')
        for r in range(8):
            a(f'v_mul_f32 v{WF + r}, s{sT0}, v{WF + r}')
        cmul(j, lambda r: WF + r, lambda r: WF + 4 + r, True, lambda r: OP + 4 * j + r)
    stage(True, IR, II)
    for j in range(4):
        cmul(j, lambda r: TC + r, lambda r: TS + r, True, lambda r: OP + 4 * j + r)
    stage(False, IR, II)
    if stamp:
        a('s_memtime s[56:57]')
    for r in range(4):
        for j in range(4):
            a(f'v_cvt_pk_bf16_f32 v{RAW + 4*r + j}, v{DR + 4*j + r}, v{DI + 4*j + r}')
        a(f'buffer_store_dwordx4 {vr(RAW + 4*r, 4)}, v{vZ}, s[{SZ}:{SZ+3}], 0 offen offset:{r * 128}')
    if stamp:
        stamp_out(a, sW, 36)
    a.label(f'{name}_end')
    a('s_endpgm')
    prefetch_role(a, f'{name}_pf', f'{name}_end', [(KA_WG, 4 << 20, WB - (4 << 20)), (KA_WU, 0, WB)])
    return descriptor(name, 136, 72, 136), [(name, 256, 256, 0), (name + '+pf', 256 + PF_WGS, 256, 0)]


P3_RS = 2048 + 64
P3_LDS = 8 * P3_RS


def gen_p3(a, names=('p3a_kernel', 'p3b_kernel'), stamp=False):
    SX, SZ, S1, SL = 4, 8, 12, 16
    sW, sT0, sT1, sR0, sR1 = 20, 21, 22, 23, 30
    vL = 0
    ZR = 8
    XR = 24
    CR, CI, TWC, TWS, C2, R8 = 40, 48, 56, 72, 88, 104
    BOP = 106
    D8 = 122
    AOP = 8
    DD = [(154, 170), (186, 202)]
    PK = [218, 234]
    vZ, vX, vEW, vER, vLN = 250, 251, 252, 253, 254
    ST = 106
    base = entries(a, names, stamp)
    a(f'''
    s_cmp_ge_u32 s2, 256
    s_cbranch_scc1 {base}_pf
    v_lshrrev_b32 v1, 6, v0
    v_and_b32 v{vL}, 63, v0
    v_readfirstlane_b32 s{sW}, v1
    ''')
    srd(a, SZ, 36, 37, WS_Z, 4 << 20)
    z_voffset(a, vZ, vL, sW, 3, 4, sT0, sT1)
    for t in range(2):
        a(f's_mov_b32 s{sT0}, {t * 4 * 8 * 16384}')
        a(f's_mov_b32 s{sT1}, {t * 4 * 8 * 16384 + 16384}')
        a(f'buffer_load_dwordx4 {vr(ZR + 8*t, 4)}, v{vZ}, s[{SZ}:{SZ+3}], s{sT0} offen')
        a(f'buffer_load_dwordx4 {vr(ZR + 8*t + 4, 4)}, v{vZ}, s[{SZ}:{SZ+3}], s{sT1} offen')
    srd(a, SX, 32, 33, 0, 4 << 20)
    a(f'''
    v_and_b32 v1, 31, v{vL}
    v_lshrrev_b32 v2, 5, v{vL}
    v_lshlrev_b32 v3, 6, v1
    v_lshl_add_u32 v{vX}, v2, 5, v3
    s_lshl_b32 s{sR0}, s{sW}, 9
    s_add_u32 s{sR0}, s{sR0}, s2
    s_lshl_b32 s{sR0}, s{sR0}, 11
    s_add_u32 s{sR1}, s{sR0}, {256 * 2048}
    buffer_load_dwordx4 {vr(XR,4)}, v{vX}, s[{SX}:{SX+3}], s{sR0} offen
    buffer_load_dwordx4 {vr(XR+4,4)}, v{vX}, s[{SX}:{SX+3}], s{sR0} offen offset:16
    buffer_load_dwordx4 {vr(XR+8,4)}, v{vX}, s[{SX}:{SX+3}], s{sR1} offen
    buffer_load_dwordx4 {vr(XR+12,4)}, v{vX}, s[{SX}:{SX+3}], s{sR1} offen offset:16
    ''')
    srd(a, S1, 36, 37, WS_X1, 4 << 20)
    srd(a, SL, 36, 37, WS_LNX, 4 << 20)
    radix8_const(a, R8, vL, 3, +1)
    a(f'''
    v_lshrrev_b32 v3, 4, v{vL}
    v_mul_u32_u24 v3, {2 * P3_RS}, v3
    v_and_b32 v4, 15, v{vL}
    v_lshl_add_u32 v3, v4, 4, v3
    s_lshl_b32 s{sT0}, s{sW}, 9
    v_add_u32 v{vEW}, s{sT0}, v3
    v_lshl_add_u32 v3, v2, 7, v1
    v_lshlrev_b32 v3, 2, v3
    s_mul_i32 s{sT0}, s{sW}, {2 * P3_RS}
    v_add_u32 v{vER}, s{sT0}, v3
    s_and_b32 s{sT0}, s2, 7
    s_lshl_b32 s{sT0}, s{sT0}, 5
    s_lshr_b32 s{sT1}, s2, 3
    s_add_u32 s{sT0}, s{sT0}, s{sT1}
    s_lshr_b32 s{sT1}, s{sT0}, 2
    s_sub_u32 s{sT1}, 0, s{sT1}
    s_and_b32 s{sT1}, s{sT1}, 3
    v_lshlrev_b32 v3, 1, v2
    v_xor_b32 v3, s{sT1}, v3
    v_lshlrev_b32 v3, 4, v3
    v_lshl_add_u32 v3, v1, 14, v3
    s_lshl_b32 s{sT0}, s{sT0}, 6
    v_add_u32 v{vLN}, s{sT0}, v3
    ; n1 = pi(i) = 16*((i>>2)&1) + (i&3) + 4*(i>>3)
    v_bfe_u32 v3, v{vL}, 2, 1
    v_and_b32 v4, 3, v{vL}
    v_lshl_add_u32 v4, v3, 4, v4
    v_bfe_u32 v3, v{vL}, 3, 2
    v_lshl_add_u32 v4, v3, 2, v4
    v_cvt_f32_u32 v4, v4
    v_cvt_f32_u32 v2, v2
    v_cvt_f32_u32 v1, v1
    v_mul_f32 v3, v4, v2
    v_mul_f32 v5, {f32hex(4/32.0)}, v3
    ''')
    for q in range(2):
        for u in range(4):
            sincos(a, D8, D8 + 1, 4, (8 * q + u) / 32.0, 5, 6)
            a(f'v_cvt_pk_bf16_f32 v{CR + 4*q + u}, v{D8}, -v{D8+1}')
            a(f'v_cvt_pk_bf16_f32 v{CI + 4*q + u}, v{D8+1}, v{D8}')
    a('s_waitcnt vmcnt(4)')
    for t in range(2):
        for m in range(4):
            a(f'v_mov_b32 v{BOP + 8*t + 2*m}, v{ZR + 8*t + m}')
            a(f'v_mov_b32 v{BOP + 8*t + 2*m + 1}, v{ZR + 8*t + 4 + m}')
    for t in range(2):
        for m in range(4):
            a(f'v_mfma_f32_16x16x16_bf16 {vr(D8 + 16*t + 4*m, 4)}, {vr(R8, 2)}, {vr(BOP + 8*t + 2*m, 2)}, 0')
    a(f'v_mul_f32 v5, {f32hex(4/1024.0)}, v3')
    for r in range(8):
        sincos(a, TWC + r, TWS + r, 4, ((r & 3) + 8 * (r >> 2)) / 1024.0, 5, 6)
    for t in range(2):
        for m in range(4):
            a(f'v_cvt_pk_bf16_f32 v{ZR + 8*t + m}, v{D8 + 16*t + 4*m}, v{D8 + 16*t + 4*m + 1}')
            a(f'v_cvt_pk_bf16_f32 v{ZR + 8*t + 4 + m}, v{D8 + 16*t + 4*m + 2}, v{D8 + 16*t + 4*m + 3}')
        a(f'ds_write_b128 v{vEW}, {vr(ZR + 8*t, 4)} offset:{t * 256}')
        a(f'ds_write_b128 v{vEW}, {vr(ZR + 8*t + 4, 4)} offset:{t * 256 + P3_RS}')
    for r in range(8, 16):
        sincos(a, TWC + r, TWS + r, 4, ((r & 3) + 8 * (r >> 2)) / 1024.0, 5, 6)
    a('s_waitcnt lgkmcnt(0)')
    a('s_barrier')
    for e in range(2):
        for q in range(2):
            for u in (0, 2):
                o = (e * P3_RS) // 4
                a(f'v_add_u32 v7, {e * P3_RS + (8*q) * 128}, v{vER}')
                a(f'ds_read2_b32 {vr(AOP + 8*e + 4*q + u, 2)}, v7 offset0:{32*u} offset1:{32*(u+1)}')
    a(f'v_mul_f32 v3, v1, v2')
    a(f'v_mul_f32 v5, {f32hex(4/32.0)}, v3')
    for q in range(4):
        for u in range(4):
            sincos(a, D8, D8 + 1, 1, (8 * q + u) / 32.0, 5, 6)
            a(f'v_cvt_pk_bf16_f32 v{C2 + 4*q + u}, v{D8}, -v{D8+1}')
    if stamp:
        a('s_memtime s[54:55]')
    a('s_waitcnt lgkmcnt(0)')
    for e in range(2):
        a(f'v_readlane_b32 s{24 + e}, v{AOP + 8*e}, 0')
        a(f'v_writelane_b32 v{AOP + 8*e}, 0, 0')
    for e in range(2):
        DR, DI = DD[e]
        for (d, c) in ((DR, CR), (DI, CI)):
            for q in range(2):
                cc = '0' if q == 0 else vr(d, 16)
                a(f'v_mfma_f32_32x32x16_bf16 {vr(d,16)}, {vr(AOP + 8*e + 4*q, 4)}, {vr(c + 4*q, 4)}, {cc}')
    for e in range(2):
        a(f's_lshl_b32 s{24 + e}, s{24 + e}, 16')
        a(f'v_mul_f32 v1, 0.5, s{24+e}'.replace('v_mul_f32', 'v_mul_f32_e64'))
        for r in range(16):
            if r & 1:
                a(f'v_sub_f32 v{D8 + 16*e + r}, 0, v1')
            else:
                a(f'v_mov_b32 v{D8 + 16*e + r}, v1')
    for e in range(2):
        DR, DI = DD[e]
        P = PK[e]
        for r0 in range(0, 16, 4):
            for r in range(r0, r0 + 4):
                a(f'v_mul_f32 v{1 + (r & 3)}, v{DR + r}, v{TWC + r}')
                a(f'v_mul_f32 v{114 + (r & 3)}, v{DI + r}, v{TWC + r}')
            for r in range(r0, r0 + 4):
                a(f'v_fma_f32 v{1 + (r & 3)}, -v{DI + r}, v{TWS + r}, v{1 + (r & 3)}')
                a(f'v_fmac_f32 v{114 + (r & 3)}, v{DR + r}, v{TWS + r}')
            for r in range(r0, r0 + 4):
                a(f'v_cvt_pk_bf16_f32 v{P + r}, v{1 + (r & 3)}, v{114 + (r & 3)}')
        for q in range(4):
            a(f'v_mfma_f32_32x32x16_bf16 {vr(D8 + 16*e, 16)}, {vr(P + 4*q, 4)}, {vr(C2 + 4*q, 4)}, {vr(D8 + 16*e, 16)}')
    if stamp:
        a('s_memtime s[56:57]')
    a('s_waitcnt vmcnt(0)')
    for e in range(2):
        Y, XF = D8 + 16 * e, DD[e][0]
        for c in range(8):
            a(f'v_cvt_pk_bf16_f32 v{PK[e] + c}, v{Y + 2*c}, v{Y + 2*c + 1}')
        for c in range(8):
            a(f'v_lshlrev_b32 v{Y + 2*c}, 16, v{PK[e] + c}')
            a(f'v_and_b32 v{Y + 2*c + 1}, 0xffff0000, v{PK[e] + c}')
            a(f'v_lshlrev_b32 v{XF + 2*c}, 16, v{XR + 8*e + c}')
            a(f'v_and_b32 v{XF + 2*c + 1}, 0xffff0000, v{XR + 8*e + c}')
        for c in range(8):
            a(f'v_pk_add_f32 {vr(XF + 2*c, 2)}, {vr(XF + 2*c, 2)}, {vr(Y + 2*c, 2)}')
        for c in range(8):
            a(f'v_cvt_pk_bf16_f32 v{XR + 8*e + c}, v{XF + 2*c}, v{XF + 2*c + 1}')
        so = (sR0, sR1)[e]
        a(f'buffer_store_dwordx4 {vr(XR + 8*e, 4)}, v{vX}, s[{S1}:{S1+3}], s{so} offen')
        a(f'buffer_store_dwordx4 {vr(XR + 8*e + 4, 4)}, v{vX}, s[{S1}:{S1+3}], s{so} offen offset:16')
        for c in range(8):
            a(f'v_lshlrev_b32 v{XF + 2*c}, 16, v{XR + 8*e + c}')
            a(f'v_and_b32 v{XF + 2*c + 1}, 0xffff0000, v{XR + 8*e + c}')
        ln_stats(a, XF, ST + 4 * e, None)
        a(f'v_add_f32 v{ST + 4*e}, v{ST + 4*e}, v{ST + 4*e + 1}')
    wave_reduce(a, [ST, ST + 2, ST + 4, ST + 6], [24, 26, 27, 29])
    a('s_mov_b32 s25, 0')
    a('s_mov_b32 s28, 0')
    for e in range(2):
        ln_finish(a, 24 + 3 * e, 25 + 3 * e, 26 + 3 * e, ST + 4 * e)
    a(f'v_xor_b32 v1, 16, v{vLN}')
    for e in range(2):
        R, XF = ST + 4 * e, DD[e][0]
        for c in range(8):
            a(f'v_pk_fma_f32 {vr(XF + 2*c, 2)}, {vr(XF + 2*c, 2)}, {vr(R,2)}, {vr(R+2,2)} op_sel_hi:[1,0,0]')
        order = [0, 1, 4, 5, 2, 3, 6, 7]
        for i, c in enumerate(order):
            a(f'v_cvt_pk_bf16_f32 v{PK[e] + i}, v{XF + 2*c}, v{XF + 2*c + 1}')
        a(f's_lshl_b32 s{sT0}, s{sW}, 20')
        a(f's_add_u32 s{sT0}, s{sT0}, {e << 19}')
        a(f'buffer_store_dwordx4 {vr(PK[e], 4)}, v{vLN}, s[{SL}:{SL+3}], s{sT0} offen')
        a(f'buffer_store_dwordx4 {vr(PK[e] + 4, 4)}, v1, s[{SL}:{SL+3}], s{sT0} offen')
    if stamp:
        stamp_out(a, sW, 36)
    a.label(f'{base}_end')
    a('s_endpgm')
    prefetch_role(a, f'{base}_pf', f'{base}_end', [(KA_WD, 0, WB)])
    return (''.join(descriptor(n, 256, 72, 256) for n in names), [(n, 256 + PF_WGS * (n == names[0]), 256, P3_LDS) for n in names])


def gen_fin(a, name='fin_kernel', stamp=False):
    kernel_start(a, name)
    if stamp:
        a('s_memtime s[50:51]\ns_memrealtime s[52:53]\ns_memtime s[54:55]\ns_memtime s[56:57]')
    a(f'''
    s_load_dwordx2 s[36:37], s[0:1], {KA_WS}
    s_load_dwordx2 s[32:33], s[0:1], {KA_OUT}
    s_cmp_ge_u32 s2, 256
    s_cbranch_scc1 {name}_end
    v_lshrrev_b32 v1, 6, v0
    v_readfirstlane_b32 s20, v1
    v_lshlrev_b32 v1, 4, v0
    s_lshl_b32 s21, s2, 14
    s_add_u32 s22, s21, {4 << 20}
    s_waitcnt lgkmcnt(0)
    ''')
    srd(a, 8, 36, 37, WS_P, NSPLIT << 22)
    srd(a, 12, 32, 33, 0, 4 << 20)
    a('v_add_u32 v2, 8192, v1')
    for i in range(2):
        for k in range(NSPLIT):
            a(f's_add_u32 s22, s21, {k << 22}')
            a(f'buffer_load_dwordx4 {vr(4 + 16*i + 4*k, 4)}, v{1+i}, s[8:11], s22 offen')
    for i in range(2):
        a(f's_waitcnt vmcnt({NSPLIT if i == 0 else 1})')
        for c in range(4):
            for k in range(NSPLIT):
                a(f'v_lshlrev_b32 v{36 + 2*k}, 16, v{4 + 16*i + 4*k + c}')
                a(f'v_and_b32 v{37 + 2*k}, 0xffff0000, v{4 + 16*i + 4*k + c}')
            if NSPLIT == 4:
                a('v_pk_add_f32 v[38:39], v[38:39], v[40:41]')
                a('v_pk_add_f32 v[38:39], v[38:39], v[42:43]')
            a('v_pk_add_f32 v[36:37], v[36:37], v[38:39]')
            a(f'v_cvt_pk_bf16_f32 v{44 + 4*i + c}, v36, v37')
        a(f'buffer_store_dwordx4 {vr(44 + 4*i, 4)}, v{1+i}, s[12:15], s21 offen sc1')
    if stamp:
        stamp_out(a, 20, 36)
    a.label(f'{name}_end')
    a('s_endpgm')
    return descriptor(name, 56, 72, 56), (name, 256, 512, 0)
```

```python
from gen_common import *
from gen_p import sincos, wave_reduce, radix8_const, ln_stats, ln_finish, EPS, WB

WS_WT = 20 << 20
PF_WGS = 256
SC1 = ' sc1'
PF2, PF3 = 2 << 20, 3 << 20
PF1 = 0


def fma_sincos(a, dc, ds, fv, fk, base, tmp):
    a(f'v_fma_f32 v{tmp}, v{fv}, v{fk}, v{base}')
    a(f'v_cos_f32 v{dc}, v{tmp}')
    a(f'v_sin_f32 v{ds}, v{tmp}')


def entries2(a, names, stamp):
    base = names[0][:-8]
    for li, name in enumerate(names):
        kernel_start(a, name)
        if stamp:
            a('s_memtime s[50:51]\ns_memrealtime s[52:53]')
        a(f's_load_dwordx2 s[36:37], s[0:1], {KA_WS}')
        a(f's_load_dwordx2 s[32:33], s[0:1], {KA_X}')
        a(f's_mov_b32 s38, {li}')
        if li == 0:
            a(f's_branch {base}_body')
    a.label(f'{base}_body')
    return base


def stream_loads(a, items, vaddr, r0, wgs, per_inst):
    r = r0
    for (lo, st, n) in items:
        srd(a, 4, lo, lo + 1, st, n)
        chunk = wgs * per_inst
        for c in range(-(-n // chunk)):
            a(f's_mov_b32 s21, {c * chunk}')
            a(f'buffer_load_dwordx4 {vr(r, 4)}, v{vaddr}, s[4:7], s21 offen')
            r += 4


def prefetch_role(a, label, endlabel, items):
    a.label(label)
    a(f's_cmp_ge_u32 s2, {256 + PF_WGS}')
    a(f's_cbranch_scc1 {endlabel}')
    for i, (ka, st, n) in enumerate(items):
        a(f's_load_dwordx2 s[{40 + 2*i}:{41 + 2*i}], s[0:1], {ka}')
    a('s_sub_u32 s20, s2, 256')
    a('s_lshl_b32 s20, s20, 13')
    a('v_lshlrev_b32 v1, 4, v0')
    a('v_add_u32 v1, s20, v1')
    a('s_waitcnt lgkmcnt(0)')
    stream_loads(a, [(40 + 2 * i, st, n) for i, (ka, st, n) in enumerate(items)], 1, 4, PF_WGS, 8192)
    a(f's_branch {endlabel}')


def zoff(a, dst, vL, sW, t0, t1, sT0, sT1):
    a(f'''
    v_bfe_u32 v{t0}, v{vL}, 2, 2
    v_lshrrev_b32 v{t1}, 4, v{vL}
    v_lshlrev_b32 v{t0}, 17, v{t0}
    v_lshl_add_u32 v{t0}, v{t1}, 15, v{t0}
    v_and_b32 v{t1}, 3, v{vL}
    v_lshl_add_u32 v{dst}, v{t1}, 4, v{t0}
    s_and_b32 s{sT0}, s2, 7
    s_lshl_b32 s{sT0}, s{sT0}, 5
    s_lshr_b32 s{sT1}, s2, 3
    s_add_u32 s{sT0}, s{sT0}, s{sT1}
    s_lshl_b32 s{sT0}, s{sT0}, 6
    s_lshl_b32 s{sT1}, s{sW}, 19
    s_add_u32 s{sT0}, s{sT0}, s{sT1}
    v_add_u32 v{dst}, s{sT0}, v{dst}
    ''')


def twiddle(a, DR, DI, TW, P, conj, T1, T2, hook=None):
    for r0 in range(0, 16, 4):
        if hook:
            hook(r0)
        for r in range(r0, r0 + 4):
            a(f'v_mul_f32 v{T1 + (r & 3)}, v{DR + r}, v{TW + 2*r}')
            a(f'v_mul_f32 v{T2 + (r & 3)}, v{DI + r}, v{TW + 2*r}')
        n1, n2 = ('-', '') if conj else ('', '-')
        for r in range(r0, r0 + 4):
            a(f'v_fma_f32 v{T1 + (r & 3)}, {n1}v{DI + r}, v{TW + 2*r + 1}, v{T1 + (r & 3)}')
            a(f'v_fma_f32 v{T2 + (r & 3)}, {n2}v{DR + r}, v{TW + 2*r + 1}, v{T2 + (r & 3)}')
        for r in range(r0, r0 + 4):
            a(f'v_cvt_pk_bf16_f32 v{P + r}, v{T1 + (r & 3)}, v{T2 + (r & 3)}')


P1_S, P1_E, P1_ES = 16384, 32768, 4096 + 128
P1_LDS = P1_E + 4 * P1_ES


def gen_p1(a, names=('p1a_kernel', 'p1b_kernel'), stamp=False):
    SX, SZ, SP, S2 = 4, 8, 12, 16
    sW, sT0, sT1, sRow = 20, 21, 22, 23
    vL = 0
    RAW, PA, PB = 8, 16, 24
    CT = 32
    C1, NS1, C2, TW = CT, CT + 8, CT, CT + 16
    R8, ST = 80, 82
    XF = 86
    vZ, vLW, vLR, vEW, vER, vTB = 118, 119, 120, 121, 122, 123
    K = XF + 16
    base = entries2(a, names, stamp)
    a(f'''
    s_cmp_ge_u32 s2, 256
    s_cbranch_scc1 {base}_pf
    v_lshrrev_b32 v1, 6, v0
    v_and_b32 v{vL}, 63, v0
    v_readfirstlane_b32 s{sW}, v1
    v_lshlrev_b32 v{vTB}, 4, v{vL}
    ; k1 = 16(w>>2) + 2(w&3), k2 = 2(w&1) + 8(w>>1)
    v_lshrrev_b32 v2, 2, v1
    v_and_b32 v3, 3, v1
    v_lshlrev_b32 v3, 1, v3
    v_lshl_add_u32 v2, v2, 4, v3
    v_lshrrev_b32 v4, 5, v{vL}
    v_lshl_add_u32 v2, v4, 3, v2
    v_cvt_f32_u32 v2, v2
    v_lshrrev_b32 v3, 1, v1
    v_and_b32 v5, 1, v1
    v_lshlrev_b32 v5, 1, v5
    v_lshl_add_u32 v3, v3, 3, v5
    v_lshl_add_u32 v3, v4, 2, v3
    v_cvt_f32_u32 v3, v3
    v_and_b32 v4, 31, v{vL}
    v_cvt_f32_u32 v4, v4
    v_mul_f32 v5, {f32hex(1/32.0)}, v4
    v_mul_f32 v6, v5, v2
    v_add_f32 v7, v6, v5
    v_cos_f32 v{XF}, v6
    v_cos_f32 v{XF+1}, v7
    v_sin_f32 v{XF+2}, v6
    v_sin_f32 v{XF+3}, v7
    v_mul_f32 v5, {f32hex(1/1024.0)}, v4
    v_mul_f32 v6, v5, v3
    v_add_f32 v7, v6, v5
    v_cos_f32 v{K+4}, v6
    v_sin_f32 v{K+5}, v6
    v_cos_f32 v{K+6}, v7
    v_sin_f32 v{K+7}, v7
    v_cvt_pk_bf16_f32 v{K}, v{XF}, v{XF+1}
    v_cvt_pk_bf16_f32 v{K+1}, -v{XF+2}, -v{XF+3}
    v_bfe_u32 v4, v{vL}, 1, 4
    v_cvt_f32_u32 v4, v4
    v_mul_f32 v5, {f32hex(1/32.0)}, v4
    v_and_b32 v6, 1, v{vL}
    v_cvt_f32_u32 v6, v6
    v_mul_f32 v6, 0.25, v6
    v_fma_f32 v6, v5, v3, v6
    v_add_f32 v7, v6, v5
    v_cos_f32 v{XF}, v6
    v_sin_f32 v{XF+1}, v6
    v_cos_f32 v{XF+2}, v7
    v_sin_f32 v{XF+3}, v7
    s_lshl_b32 s{sRow}, s{sW}, 8
    s_add_u32 s{sRow}, s{sRow}, s2
    s_lshl_b32 s{sRow}, s{sRow}, 11
    v_cvt_pk_bf16_f32 v{K+2}, v{XF}, v{XF+1}
    v_cvt_pk_bf16_f32 v{K+3}, v{XF+2}, v{XF+3}
    s_waitcnt lgkmcnt(0)
    s_add_u32 s40, s36, {hex(WS_P)}
    s_addc_u32 s41, s37, 0
    s_cmp_eq_u32 s38, 0
    s_cselect_b32 s40, s32, s40
    s_cselect_b32 s41, s33, s41
    ''')
    srd(a, SX, 40, 41, 0, 4 << 20)
    a(f'''
    buffer_load_dwordx4 {vr(RAW,4)}, v{vTB}, s[{SX}:{SX+3}], s{sRow} offen
    buffer_load_dwordx4 {vr(RAW+4,4)}, v{vTB}, s[{SX}:{SX+3}], s{sRow} offen offset:1024
    s_cmp_eq_u32 s38, 0
    s_cbranch_scc1 {base}_nopart
    ''')
    srd(a, SP, 36, 37, WS_P + (4 << 20), 12 << 20)
    PR = [PA, PB, XF + 24][:NSPLIT - 1]
    for k, pr in enumerate(PR):
        a(f's_add_u32 s44, s{sRow}, {k << 22}')
        a(f'buffer_load_dwordx4 {vr(pr,4)}, v{vTB}, s[{SP}:{SP+3}], s44 offen')
        a(f'buffer_load_dwordx4 {vr(pr+4,4)}, v{vTB}, s[{SP}:{SP+3}], s44 offen offset:1024')
    srd(a, S2, 36, 37, WS_X2, 4 << 20)
    a.label(f'{base}_nopart')
    a(f'''
    s_lshr_b32 s{sT0}, s{sW}, 2
    s_lshl_b32 s{sT0}, s{sT0}, 10
    s_and_b32 s{sT1}, s{sW}, 3
    s_lshl_b32 s{sT1}, s{sT1}, 2
    s_add_u32 s{sT0}, s{sT0}, s{sT1}
    v_add_u32 v1, s{sT0}, v{vTB}
    ds_write_b32 v1, v{K}
    ds_write_b32 v1, v{K+1} offset:2048
    s_lshr_b32 s{sT0}, s{sW}, 1
    s_lshl_b32 s{sT0}, s{sT0}, 10
    s_and_b32 s{sT1}, s{sW}, 1
    s_lshl_b32 s{sT1}, s{sT1}, 3
    s_add_u32 s{sT0}, s{sT0}, s{sT1}
    v_add_u32 v1, s{sT0}, v{vTB}
    ds_write_b64 v1, {vr(K+2,2)} offset:4096
    s_lshl_b32 s{sT0}, s{sW}, 10
    v_add_u32 v1, s{sT0}, v{vTB}
    ds_write_b128 v1, {vr(K+4,4)} offset:8192
    ''')
    srd(a, SZ, 36, 37, WS_Z, 4 << 20)
    a(f'''
    s_lshl_b32 s{sT0}, s{sW}, 11
    s_add_u32 s{sT0}, s{sT0}, {P1_S}
    v_add_u32 v{vLW}, s{sT0}, v{vTB}
    v_lshrrev_b32 v3, 5, v{vL}
    v_bfe_u32 v4, v{vL}, 2, 2
    v_lshl_add_u32 v3, v3, 3, v4
    v_lshlrev_b32 v3, 6, v3
    v_bfe_u32 v4, v{vL}, 4, 1
    v_lshl_add_u32 v3, v4, 5, v3
    v_and_b32 v4, 3, v{vL}
    v_lshl_add_u32 v3, v4, 3, v3
    v_add_u32 v{vLR}, s{sT0}, v3
    s_waitcnt lgkmcnt(0)
    s_barrier
    ''')
    for g in range(4):
        a(f'ds_read_b128 {vr(CT + 4*g, 4)}, v{vTB} offset:{g * 1024}')
    for g in range(8):
        a(f'ds_read_b128 {vr(TW + 4*g, 4)}, v{vTB} offset:{(8 + g) * 1024}')
    a(f'''
    s_lshr_b32 s{sT0}, s{sW}, 1
    s_mul_i32 s{sT0}, s{sT0}, {P1_ES}
    s_and_b32 s{sT1}, s{sW}, 1
    s_lshl_b32 s{sT1}, s{sT1}, 2
    s_add_u32 s{sT0}, s{sT0}, s{sT1}
    s_add_u32 s{sT0}, s{sT0}, {P1_E}
    v_and_b32 v3, 31, v{vL}
    v_lshrrev_b32 v4, 5, v{vL}
    v_lshl_add_u32 v3, v4, 6, v3
    v_lshlrev_b32 v3, 3, v3
    v_add_u32 v{vEW}, s{sT0}, v3
    v_lshrrev_b32 v3, 4, v{vL}
    v_mul_u32_u24 v3, {P1_ES}, v3
    v_and_b32 v4, 15, v{vL}
    v_lshl_add_u32 v3, v4, 5, v3
    s_lshl_b32 s{sT0}, s{sW}, 9
    s_add_u32 s{sT0}, s{sT0}, {P1_E}
    v_add_u32 v{vER}, s{sT0}, v3
    ''')
    zoff(a, vZ, vL, sW, 3, 4, sT0, sT1)
    radix8_const(a, R8, vL, 1, -1)
    if stamp:
        a('s_memtime s[54:55]')
    a(f'''
    s_waitcnt vmcnt(0)
    s_cmp_eq_u32 s38, 0
    s_cbranch_scc1 {base}_ln
    ''')
    for c in range(8):
        d = XF + 8 * (c & 1)
        for k, sreg in enumerate([RAW + c] + [pr + c for pr in PR]):
            a(f'v_lshlrev_b32 v{d + 2*k}, 16, v{sreg}')
            a(f'v_and_b32 v{d + 2*k + 1}, 0xffff0000, v{sreg}')
        if NSPLIT == 4:
            a(f'v_pk_add_f32 {vr(d + 2, 2)}, {vr(d + 2, 2)}, {vr(d + 4, 2)}')
            a(f'v_pk_add_f32 {vr(d + 2, 2)}, {vr(d + 2, 2)}, {vr(d + 6, 2)}')
        a(f'v_pk_add_f32 {vr(d, 2)}, {vr(d, 2)}, {vr(d + 2, 2)}')
        a(f'v_cvt_pk_bf16_f32 v{RAW + c}, v{d}, v{d + 1}')
    a(f'buffer_store_dwordx4 {vr(RAW, 4)}, v{vTB}, s[{S2}:{S2+3}], s{sRow} offen{SC1}')
    a(f'buffer_store_dwordx4 {vr(RAW + 4, 4)}, v{vTB}, s[{S2}:{S2+3}], s{sRow} offen offset:1024{SC1}')
    a.label(f'{base}_ln')
    for c in range(8):
        a(f'v_lshlrev_b32 v{XF + 2*c}, 16, v{RAW + c}')
        a(f'v_and_b32 v{XF + 2*c + 1}, 0xffff0000, v{RAW + c}')
    ln_stats(a, XF, ST, None)
    wave_reduce(a, [ST, ST + 1, ST + 2], [24, 25, 26])
    ln_finish(a, 24, 25, 26, ST)
    for c in range(8):
        a(f'v_pk_fma_f32 {vr(XF + 2*c, 2)}, {vr(XF + 2*c, 2)}, {vr(ST,2)}, {vr(ST+2,2)} op_sel_hi:[1,0,0]')
    for c in range(8):
        a(f'v_cvt_pk_bf16_f32 v{PA + c}, v{XF + 2*c}, v{XF + 2*c + 1}')
    a(f'''
    ds_write_b128 v{vLW}, {vr(PA, 4)}
    ds_write_b128 v{vLW}, {vr(PA + 4, 4)} offset:1024
    v_mov_b32 v{ST+1}, s24
    v_subrev_f32 v{ST+1}, s25, v{ST+1}
    v_mul_f32 v{ST+1}, v{ST+1}, v{ST}
    s_waitcnt lgkmcnt(0)
    ''')
    for q in range(2):
        for jj in range(2):
            a(f'ds_read_b64_tr_b16 {vr(PB + 4*q + 2*jj, 2)}, v{vLR} offset:{(16*q + 4*jj) * 64}')
    DR, DI = XF, XF + 16
    for q in range(2):
        a(f's_waitcnt lgkmcnt({2 - 2*q})')
        for (d, c) in ((DR, C1), (DI, NS1)):
            cc = '0' if q == 0 else vr(d, 16)
            a(f'v_mfma_f32_32x32x16_bf16 {vr(d,16)}, {vr(PB + 4*q, 4)}, {vr(c + 4*q, 4)}, {cc}')
    P = 8
    for g in range(4):
        a(f'ds_read_b128 {vr(C2 + 4*g, 4)}, v{vTB} offset:{(4 + g) * 1024}')
    twiddle(a, DR, DI, TW, P, False, 1, PB)
    a('s_waitcnt lgkmcnt(0)')
    D2 = XF
    for q in range(4):
        cc = '0' if q == 0 else vr(D2, 16)
        a(f'v_mfma_f32_32x32x16_bf16 {vr(D2, 16)}, {vr(C2 + 4*q, 4)}, {vr(P + 4*q, 4)}, {cc}')
    a('s_nop 7')
    a('s_mov_b64 exec, 1')
    a(f'v_mov_b32 v{D2}, v{ST + 1}')
    a('s_mov_b64 exec, -1')
    for p in range(8):
        a(f'v_cvt_pk_bf16_f32 v{PB + p}, v{D2 + 2*p}, v{D2 + 2*p + 1}')
        kb = (p & 1) + 4 * (p >> 1)
        a(f'ds_write_b32 v{vEW}, v{PB + p} offset:{kb * 32 * 8}')
    a(f'''
    s_waitcnt lgkmcnt(0)
    s_barrier
    ds_read_b128 {vr(PA, 4)}, v{vER}
    ds_read_b128 {vr(PA + 4, 4)}, v{vER} offset:16
    s_mov_b32 s{sT1}, 16384
    ''')
    for m in range(4):
        if m % 2 == 0:
            a(f's_waitcnt lgkmcnt({1 - m // 2})')
        a(f'v_mfma_f32_16x16x16_bf16 {vr(XF + 16 + 4*m, 4)}, {vr(R8, 2)}, {vr(PA + 2*m, 2)}, 0')
    if stamp:
        a('s_memtime s[56:57]')
    for m in range(4):
        a(f'v_cvt_pk_bf16_f32 v{PB + m}, v{XF + 16 + 4*m}, v{XF + 16 + 4*m + 1}')
        a(f'v_cvt_pk_bf16_f32 v{PB + 4 + m}, v{XF + 16 + 4*m + 2}, v{XF + 16 + 4*m + 3}')
    a(f'buffer_store_dwordx4 {vr(PB, 4)}, v{vZ}, s[{SZ}:{SZ+3}], 0 offen{SC1}')
    a(f'buffer_store_dwordx4 {vr(PB + 4, 4)}, v{vZ}, s[{SZ}:{SZ+3}], s{sT1} offen{SC1}')
    if stamp:
        stamp_out(a, sW, 36)
    a.label(f'{base}_end')
    a('s_endpgm')
    a.label(f'{base}_pf')
    a(f'''
    s_cmp_ge_u32 s2, {256 + PF_WGS}
    s_cbranch_scc1 {base}_end
    s_cmp_eq_u32 s38, 0
    s_cbranch_scc0 {base}_end
    s_load_dwordx4 s[40:43], s[0:1], {KA_WR}
    v_lshrrev_b32 v1, 6, v0
    v_and_b32 v{vL}, 63, v0
    v_readfirstlane_b32 s{sW}, v1
    s_sub_u32 s24, s2, 256
    s_cmp_ge_u32 s{sW}, 2
    s_cbranch_scc1 {base}_pf2
    s_and_b32 s25, s24, 7
    s_bfe_u32 s26, s24, 0x30003
    s_lshr_b32 s27, s24, 6
    s_lshl_b32 s28, s27, 4
    s_lshl_b32 s29, s{sW}, 3
    s_add_u32 s28, s28, s29
    v_lshrrev_b32 v2, 3, v{vL}
    v_add_u32 v4, s28, v2
    s_lshl_b32 s28, s27, 6
    s_add_u32 s28, s28, s29
    v_add_u32 v2, s28, v2
    v_lshl_add_u32 v2, v2, 3, s25
    v_mul_u32_u24 v2, 1026, v2
    v_and_b32 v3, 7, v{vL}
    s_lshl_b32 s28, s26, 7
    v_add_u32 v5, s28, v2
    v_lshl_add_u32 v5, v3, 4, v5
    v_lshrrev_b32 v6, 1, v3
    v_lshlrev_b32 v6, 17, v6
    v_and_b32 v7, 1, v3
    v_lshl_add_u32 v6, v7, 13, v6
    v_lshl_add_u32 v6, v4, 4, v6
    s_lshl_b32 s28, s26, 5
    s_add_u32 s28, s28, s25
    s_lshl_b32 s28, s28, 14
    v_add_u32 v6, s28, v6
    s_waitcnt lgkmcnt(0)
    ''')
    srd(a, 4, 40, 41, 0, 2048 * 513 * 2)
    srd(a, 8, 42, 43, 0, 2048 * 513 * 2)
    for r in range(4):
        a(f's_mov_b32 s{sT0}, {r * 128 * 1026}')
        a(f'buffer_load_dwordx4 {vr(8 + 4*r, 4)}, v5, s[4:7], s{sT0} offen')
        a(f'buffer_load_dwordx4 {vr(24 + 4*r, 4)}, v5, s[8:11], s{sT0} offen')
    srd(a, 12, 36, 37, WS_WT, 4 << 20)
    a(f'''
    s_cmp_eq_u32 s26, 0
    s_cbranch_scc0 {base}_nonyq
    ''')
    for r in range(4):
        a(f's_mov_b32 s{sT0}, {r * 128 * 1026}')
        a(f'buffer_load_ushort v{40 + r}, v2, s[4:7], s{sT0} offen offset:1024')
        a(f'buffer_load_ushort v{44 + r}, v2, s[8:11], s{sT0} offen offset:1024')
    a(f'''
    s_mov_b32 s{sT0}, 0xffff0000
    v_cmp_eq_u32 vcc, 0, v3
    s_waitcnt vmcnt(0)
    ''')
    for r in range(4):
        for (d, n) in ((8 + 4 * r, 40 + r), (24 + 4 * r, 44 + r)):
            a(f'v_and_or_b32 v{n}, v{d}, s{sT0}, v{n}')
            a(f'v_cndmask_b32 v{d}, v{d}, v{n}, vcc')
    a.label(f'{base}_nonyq')
    a(f'''
    s_mov_b32 s27, 0x05040100
    s_mov_b32 s28, 0x07060302
    v_add_u32 v7, 4096, v6
    s_waitcnt vmcnt(0)
    ''')
    for i in range(8):
        for r in range(4):
            a(f'v_perm_b32 v{48 + 4*i + r}, v{24 + 4*r + (i >> 1)}, v{8 + 4*r + (i >> 1)}, s{27 + (i & 1)}')
        a(f'buffer_store_dwordx4 {vr(48 + 4*i, 4)}, v{6 + (i >> 2)}, s[12:15], 0 offen offset:{(i & 3) * 1024}{SC1}')
    a('s_endpgm')
    a.label(f'{base}_pf2')
    if PF1:
        a(f'''
        s_cmp_lt_u32 s{sW}, 4
        s_cbranch_scc1 {base}_end
        s_load_dwordx4 s[44:47], s[0:1], {KA_WG}
        s_lshl_b32 s24, s24, 12
        s_sub_u32 s{sT0}, s{sW}, 4
        s_lshl_b32 s{sT0}, s{sT0}, 10
        s_add_u32 s24, s24, s{sT0}
        v_lshlrev_b32 v1, 4, v{vL}
        v_add_u32 v1, s24, v1
        s_waitcnt lgkmcnt(0)
        ''')
        stream_loads(a, [(44, 0, PF1), (46, 0, PF1)], 1, 4, PF_WGS, 4096)
    a('s_endpgm')
    return (''.join(descriptor(n, 124, 72, 124) for n in names), [(n, 256 + PF_WGS * (n == names[0]), 512, P1_LDS) for n in names])


def gen_p2(a, names=('p2a_kernel', 'p2b_kernel'), stamp=False):
    SZ, SW = 4, 8
    sW, sT0, sT1 = 20, 21, 22
    vL = 0
    RAW, WT = 8, 16
    FR, FI, IR, II = 24, 28, 32, 36
    TC, TS = 40, 44
    OP, DR, DI = 48, 56, 64
    T1, T2, WF = 72, 76, 80
    vG, vR, vLin, vW, vE = 88, 89, 90, 91, 92
    name = names[0][:-8]
    for li, nm in enumerate(names):
        kernel_start(a, nm)
        if stamp:
            a('s_memtime s[50:51]\ns_memrealtime s[52:53]')
        a(f's_load_dwordx2 s[36:37], s[0:1], {KA_WS}')
        if li == 0:
            a(f's_branch {name}_body')
    a.label(f'{name}_body')
    a(f'''
    s_cmp_ge_u32 s2, 256
    s_cbranch_scc1 {name}_pf
    v_lshrrev_b32 v1, 6, v0
    v_and_b32 v{vL}, 63, v0
    v_readfirstlane_b32 s{sW}, v1
    v_lshrrev_b32 v2, 3, v{vL}
    v_lshlrev_b32 v2, 5, v2
    v_bfe_u32 v3, v{vL}, 2, 1
    v_add_u32 v2, v2, v3
    v_lshl_add_u32 v2, v1, 2, v2
    v_lshlrev_b32 v2, 6, v2
    v_lshrrev_b32 v3, 4, v{vL}
    v_and_b32 v4, 3, v{vL}
    v_xor_b32 v4, v4, v3
    v_lshl_add_u32 v{vG}, v4, 4, v2
    v_lshlrev_b32 v{vLin}, 4, v0
    v_and_b32 v2, 7, v{vL}
    v_bfe_u32 v4, v{vL}, 3, 1
    v_lshl_add_u32 v2, v2, 1, v4
    v_lshrrev_b32 v4, 2, v2
    v_lshrrev_b32 v5, 1, v1
    v_xor_b32 v4, v4, v5
    v_lshlrev_b32 v4, 4, v4
    v_lshl_add_u32 v4, v2, 6, v4
    v_lshl_add_u32 v4, v3, 12, v4
    v_and_b32 v5, 1, v1
    v_lshl_add_u32 v{vR}, v5, 3, v4
    s_lshl_b32 s{sT1}, s{sW}, 11
    s_mov_b32 m0, s{sT1}
    s_lshl_b32 s{sT0}, s2, 14
    s_add_u32 s24, s{sT0}, {hex(WS_WT)}
    ; constants
    v_and_b32 v1, 15, v{vL}
    v_cvt_f32_u32 v1, v1
    v_cvt_f32_u32 v2, v3
    v_mul_f32 v3, v1, v2
    v_mul_f32 v4, 0.25, v3
    ''')
    for u in range(2):
        sincos(a, 6, 7, 1, u / 16.0, 4, 5)
        a(f'v_cvt_pk_bf16_f32 v{FR + u}, v6, v7')
        a(f'v_cvt_pk_bf16_f32 v{FI + u}, -v7, v6')
        a(f'v_cvt_pk_bf16_f32 v{IR + u}, v6, -v7')
        a(f'v_cvt_pk_bf16_f32 v{II + u}, v7, v6')
    a('s_waitcnt lgkmcnt(0)')
    srd(a, SZ, 36, 37, f's{sT0}', 16384)
    a(f'''
    buffer_load_dwordx4 v{vG}, s[{SZ}:{SZ+3}], 0 offen lds
    s_add_u32 m0, s{sT1}, {1024 - 128}
    ''')
    srd(a, SW, 36, 37, 's24', 16384)
    a(f'''
    buffer_load_dwordx4 v{vG}, s[{SZ}:{SZ+3}], 0 offen offset:128 lds
    v_lshlrev_b32 v8, 4, v{vL}
    v_add_u32 v8, s{sT1}, v8
    v_mov_b32 v{vLin}, v8
    buffer_load_dwordx4 {vr(WT + 4, 4)}, v8, s[{SW}:{SW+3}], 0 offen offset:1024
    buffer_load_dwordx4 {vr(WT, 4)}, v8, s[{SW}:{SW+3}], 0 offen
    ''')
    for u in range(2, 4):
        sincos(a, 6, 7, 1, u / 16.0, 4, 5)
        a(f'v_cvt_pk_bf16_f32 v{FR + u}, v6, v7')
        a(f'v_cvt_pk_bf16_f32 v{FI + u}, -v7, v6')
        a(f'v_cvt_pk_bf16_f32 v{IR + u}, v6, -v7')
        a(f'v_cvt_pk_bf16_f32 v{II + u}, v7, v6')
    a(f'v_mul_f32 v4, {f32hex(4 / 256.0)}, v3')
    for r in range(4):
        sincos(a, TC + r, TS + r, 1, r / 256.0, 4, 5)
    if stamp:
        a('s_memtime s[54:55]')
    a('s_waitcnt vmcnt(2)')
    a('s_barrier')
    for u in range(4):
        a(f'ds_read_b64 {vr(RAW + 2*u, 2)}, v{vR} offset:{u * 1024}')
    a('s_waitcnt lgkmcnt(0)')
    for j in range(2):
        for u in range(4):
            a(f'v_mov_b32 v{OP + 4*j + u}, v{RAW + 2*u + j}')

    def stage(atype, cr, ci):
        for j in range(2):
            for (d, c) in ((DR, cr), (DI, ci)):
                if atype:
                    a(f'v_mfma_f32_16x16x32_bf16 {vr(d + 4*j, 4)}, {vr(OP + 4*j, 4)}, {vr(c, 4)}, 0')
                else:
                    a(f'v_mfma_f32_16x16x32_bf16 {vr(d + 4*j, 4)}, {vr(c, 4)}, {vr(OP + 4*j, 4)}, 0')

    def cmul(j, cs, ss, conj):
        for r in range(4):
            a(f'v_mul_f32 v{T1 + r}, v{DR + 4*j + r}, v{cs + r}')
            a(f'v_mul_f32 v{T2 + r}, v{DI + 4*j + r}, v{cs + r}')
        n1, n2 = ('-', '') if conj else ('', '-')
        for r in range(4):
            a(f'v_fma_f32 v{T1 + r}, {n1}v{DI + 4*j + r}, v{ss + r}, v{T1 + r}')
            a(f'v_fma_f32 v{T2 + r}, {n2}v{DR + 4*j + r}, v{ss + r}, v{T2 + r}')
        for r in range(4):
            a(f'v_cvt_pk_bf16_f32 v{OP + 4*j + r}, v{T1 + r}, v{T2 + r}')

    stage(True, FR, FI)
    for j in range(2):
        cmul(j, TC, TS, False)
    stage(False, FR, FI)
    a('s_waitcnt vmcnt(0)')
    for j in range(2):
        for r in range(4):
            a(f'v_lshlrev_b32 v{WF + r}, 16, v{WT + 4*j + r}')
            a(f'v_and_b32 v{WF + 4 + r}, 0xffff0000, v{WT + 4*j + r}')
        cmul(j, WF, WF + 4, True)
    stage(True, IR, II)
    for j in range(2):
        cmul(j, TC, TS, True)
    stage(False, IR, II)
    if stamp:
        a('s_memtime s[56:57]')
    for r in range(4):
        for j in range(2):
            a(f'v_cvt_pk_bf16_f32 v{RAW + 2*r + j}, v{DR + 4*j + r}, v{DI + 4*j + r}')
        a(f'ds_write_b64 v{vR}, {vr(RAW + 2*r, 2)} offset:{r * 1024}')
    a(f'''
    s_waitcnt lgkmcnt(0)
    s_barrier
    ds_read_b128 {vr(OP, 4)}, v{vLin}
    ds_read_b128 {vr(OP + 4, 4)}, v{vLin} offset:1024
    s_waitcnt lgkmcnt(1)
    buffer_store_dwordx4 {vr(OP, 4)}, v{vG}, s[{SZ}:{SZ+3}], 0 offen{SC1}
    s_waitcnt lgkmcnt(0)
    buffer_store_dwordx4 {vr(OP + 4, 4)}, v{vG}, s[{SZ}:{SZ+3}], 0 offen offset:128{SC1}
    ''')
    if stamp:
        stamp_out(a, sW, 36)
    a.label(f'{name}_end')
    a('s_endpgm')
    prefetch_role(a, f'{name}_pf', f'{name}_end', [(KA_WG, PF1, PF2), (KA_WU, PF1, PF2)])
    return ''.join(descriptor(n, 96, 72, 96) for n in names), [(names[0], 256 + PF_WGS, 512, 16384), (names[1], 256, 512, 16384)]


P3_E, P3_RS = 16384, 2048 + 64
P3_LDS = P3_E + 8 * P3_RS


def gen_p3(a, names=('p3a_kernel', 'p3b_kernel'), stamp=False, pf_wd=True):
    SX, SZ, S1, SL = 4, 8, 12, 16
    sW, sT0, sT1, sRow = 20, 21, 22, 23
    vL = 0
    ZR, BOP, XR = 8, 16, 24
    CT = 32
    CR, CI, C2, TW = CT, CT + 8, CT, CT + 16
    R8, ST = 80, 82
    DR, DI, Y = 86, 102, TW
    K = DI
    vZ, vX, vXS, vEW, vER, vLN, vTB = 118, 119, 120, 121, 122, 123, 124
    base = entries2(a, names, stamp)
    a(f'''
    s_cmp_ge_u32 s2, 256
    s_cbranch_scc1 {base}_pf
    v_lshrrev_b32 v1, 6, v0
    v_and_b32 v{vL}, 63, v0
    v_readfirstlane_b32 s{sW}, v1
    v_lshlrev_b32 v{vTB}, 4, v{vL}
    ''')
    zoff(a, vZ, vL, sW, 3, 4, sT0, sT1)
    a(f'''
    ; kb = 8(w>>2) + (w&3) + 4h ; k2 = 2(w&1) + 8(w>>1) + 4h
    v_lshrrev_b32 v2, 2, v1
    v_and_b32 v3, 3, v1
    v_lshl_add_u32 v2, v2, 3, v3
    v_lshrrev_b32 v4, 5, v{vL}
    v_lshl_add_u32 v2, v4, 2, v2
    v_cvt_f32_u32 v2, v2
    v_lshrrev_b32 v3, 1, v1
    v_and_b32 v5, 1, v1
    v_lshlrev_b32 v5, 1, v5
    v_lshl_add_u32 v3, v3, 3, v5
    v_lshl_add_u32 v3, v4, 2, v3
    v_cvt_f32_u32 v3, v3
    ; n1 = 16*((i>>2)&1) + (i&3) + 4*((i>>3)&3)
    v_bfe_u32 v5, v{vL}, 2, 1
    v_and_b32 v6, 3, v{vL}
    v_lshl_add_u32 v6, v5, 4, v6
    v_bfe_u32 v5, v{vL}, 3, 2
    v_lshl_add_u32 v6, v5, 2, v6
    v_cvt_f32_u32 v6, v6
    v_mul_f32 v5, {f32hex(1/32.0)}, v6
    v_mul_f32 v5, v5, v2
    v_cos_f32 v{DR}, v5
    v_sin_f32 v{DR+1}, v5
    v_mul_f32 v5, {f32hex(1/1024.0)}, v6
    v_mul_f32 v6, v5, v3
    v_add_f32 v7, v6, v5
    v_cos_f32 v{K+4}, v6
    v_sin_f32 v{K+5}, v6
    v_cos_f32 v{K+6}, v7
    v_sin_f32 v{K+7}, v7
    v_cvt_pk_bf16_f32 v{K}, v{DR}, -v{DR+1}
    v_cvt_pk_bf16_f32 v{K+1}, v{DR+1}, v{DR}
    v_and_b32 v2, 31, v{vL}
    v_lshlrev_b32 v5, 6, v2
    v_lshl_add_u32 v{vX}, v4, 5, v5
    s_lshl_b32 s{sRow}, s{sW}, 8
    s_add_u32 s{sRow}, s{sRow}, s2
    s_lshl_b32 s{sRow}, s{sRow}, 11
    s_mov_b32 s{sT1}, 16384
    s_waitcnt lgkmcnt(0)
    ''')
    srd(a, SZ, 36, 37, WS_Z, 4 << 20)
    a(f'''
    buffer_load_dwordx4 {vr(ZR, 4)}, v{vZ}, s[{SZ}:{SZ+3}], 0 offen
    buffer_load_dwordx4 {vr(ZR + 4, 4)}, v{vZ}, s[{SZ}:{SZ+3}], s{sT1} offen
    s_add_u32 s40, s36, {hex(WS_X2)}
    s_addc_u32 s41, s37, 0
    s_cmp_eq_u32 s38, 0
    s_cselect_b32 s40, s32, s40
    s_cselect_b32 s41, s33, s41
    ''')
    srd(a, SX, 40, 41, 0, 4 << 20)
    a(f'''
    buffer_load_dwordx4 {vr(XR,4)}, v{vX}, s[{SX}:{SX+3}], s{sRow} offen
    buffer_load_dwordx4 {vr(XR+4,4)}, v{vX}, s[{SX}:{SX+3}], s{sRow} offen offset:16
    v_cvt_f32_u32 v5, v2
    v_mul_f32 v5, {f32hex(1/32.0)}, v5
    v_mul_f32 v6, v5, v3
    v_add_f32 v7, v6, v5
    v_cos_f32 v{DR}, v6
    v_sin_f32 v{DR+1}, v6
    v_cos_f32 v{DR+2}, v7
    v_sin_f32 v{DR+3}, v7
    s_lshr_b32 s{sT0}, s{sW}, 2
    s_lshl_b32 s{sT0}, s{sT0}, 10
    s_and_b32 s{sT1}, s{sW}, 3
    s_lshl_b32 s{sT1}, s{sT1}, 2
    s_add_u32 s{sT0}, s{sT0}, s{sT1}
    v_add_u32 v1, s{sT0}, v{vTB}
    ds_write_b32 v1, v{K}
    ds_write_b32 v1, v{K+1} offset:2048
    v_cvt_pk_bf16_f32 v{K+2}, v{DR}, -v{DR+1}
    v_cvt_pk_bf16_f32 v{K+3}, v{DR+2}, -v{DR+3}
    s_lshr_b32 s{sT0}, s{sW}, 1
    s_lshl_b32 s{sT0}, s{sT0}, 10
    s_and_b32 s{sT1}, s{sW}, 1
    s_lshl_b32 s{sT1}, s{sT1}, 3
    s_add_u32 s{sT0}, s{sT0}, s{sT1}
    v_add_u32 v1, s{sT0}, v{vTB}
    ds_write_b64 v1, {vr(K+2,2)} offset:4096
    s_lshl_b32 s{sT0}, s{sW}, 10
    v_add_u32 v1, s{sT0}, v{vTB}
    ds_write_b128 v1, {vr(K+4,4)} offset:8192
    v_lshl_add_u32 v3, v4, 7, v2
    v_lshlrev_b32 v3, 2, v3
    s_mul_i32 s{sT0}, s{sW}, {P3_RS}
    s_add_u32 s{sT0}, s{sT0}, {P3_E}
    v_add_u32 v{vER}, s{sT0}, v3
    v_lshrrev_b32 v3, 4, v{vL}
    v_mul_u32_u24 v5, {2 * P3_RS}, v3
    v_and_b32 v6, 15, v{vL}
    v_lshl_add_u32 v5, v6, 4, v5
    s_lshl_b32 s{sT0}, s{sW}, 8
    s_add_u32 s{sT0}, s{sT0}, {P3_E}
    v_add_u32 v{vEW}, s{sT0}, v5
    v_lshlrev_b32 v5, 6, v6
    v_lshl_add_u32 v{vXS}, v3, 4, v5
    s_and_b32 s{sT0}, s2, 7
    s_lshl_b32 s{sT0}, s{sT0}, 5
    s_lshr_b32 s{sT1}, s2, 3
    s_add_u32 s{sT0}, s{sT0}, s{sT1}
    s_lshr_b32 s{sT1}, s{sT0}, 2
    s_sub_u32 s{sT1}, 0, s{sT1}
    s_and_b32 s{sT1}, s{sT1}, 3
    v_xor_b32 v3, s{sT1}, v3
    v_lshlrev_b32 v3, 4, v3
    v_lshl_add_u32 v3, v6, 14, v3
    s_lshl_b32 s{sT0}, s{sT0}, 6
    s_lshl_b32 s{sT1}, s{sW}, 19
    s_add_u32 s{sT0}, s{sT0}, s{sT1}
    v_add_u32 v{vLN}, s{sT0}, v3
    ''')
    a(f'''
    s_lshl_b32 s{sT0}, s2, 6
    s_add_u32 s{sT0}, s{sT0}, {hex(WS_FL)}
    ''')
    srd(a, S1, 36, 37, f's{sT0}', 64)
    a(f'''
    v_lshlrev_b32 v1, 2, v{vL}
    s_lshl_b32 s{sT0}, s{sW}, 8
    v_add_u32 v1, s{sT0}, v1
    v_mov_b32 v2, 0
    buffer_store_dword v2, v1, s[{S1}:{S1+3}], 0 offen
    ''')
    radix8_const(a, R8, vL, 1, +1, scale=2.0 / (2048 * 1024))
    srd(a, S1, 36, 37, WS_X1, 4 << 20)
    srd(a, SL, 36, 37, WS_LNX, 4 << 20)
    if stamp:
        a('s_memtime s[54:55]')
    a('s_waitcnt vmcnt(3)')
    for m in range(4):
        a(f'v_mov_b32 v{BOP + 2*m}, v{ZR + m}')
        a(f'v_mov_b32 v{BOP + 2*m + 1}, v{ZR + 4 + m}')
    for m in range(4):
        a(f'v_mfma_f32_16x16x16_bf16 {vr(DR + 4*m, 4)}, {vr(R8, 2)}, {vr(BOP + 2*m, 2)}, 0')
    for m in range(4):
        a(f'v_cvt_pk_bf16_f32 v{ZR + m}, v{DR + 4*m}, v{DR + 4*m + 1}')
        a(f'v_cvt_pk_bf16_f32 v{ZR + 4 + m}, v{DR + 4*m + 2}, v{DR + 4*m + 3}')
    a(f'''
    ds_write_b128 v{vEW}, {vr(ZR, 4)}
    ds_write_b128 v{vEW}, {vr(ZR + 4, 4)} offset:{P3_RS}
    v_add_u32 v7, 1024, v{vER}
    s_waitcnt lgkmcnt(0)
    s_barrier
    ds_read2_b32 {vr(BOP, 2)}, v{vER} offset0:0 offset1:32
    ds_read2_b32 {vr(BOP + 2, 2)}, v{vER} offset0:64 offset1:96
    ds_read2_b32 {vr(BOP + 4, 2)}, v7 offset0:0 offset1:32
    ds_read2_b32 {vr(BOP + 6, 2)}, v7 offset0:64 offset1:96
    ''')
    for g in (0, 2, 1, 3):
        a(f'ds_read_b128 {vr(CT + 4*g, 4)}, v{vTB} offset:{g * 1024}')
    for g in range(8):
        a(f'ds_read_b128 {vr(TW + 4*g, 4)}, v{vTB} offset:{(8 + g) * 1024}')
    a(f'''
    s_waitcnt lgkmcnt(12)
    v_readlane_b32 s24, v{BOP}, 0
    v_writelane_b32 v{BOP}, 0, 0
    ''')
    for q in range(2):
        a(f's_waitcnt lgkmcnt({10 - 2*q})')
        for (d, c) in ((DR, CR), (DI, CI)):
            cc = '0' if q == 0 else vr(d, 16)
            a(f'v_mfma_f32_32x32x16_bf16 {vr(d,16)}, {vr(BOP + 4*q, 4)}, {vr(c + 4*q, 4)}, {cc}')
    for g in range(4):
        a(f'ds_read_b128 {vr(C2 + 4*g, 4)}, v{vTB} offset:{(4 + g) * 1024}')
    a('s_lshl_b32 s24, s24, 16')
    a('v_mul_f32_e64 v5, 0.5, s24')
    a('s_waitcnt lgkmcnt(4)')
    P = ZR

    def yinit(r0):
        if r0 == 8:
            for r in range(16):
                if r & 1:
                    a(f'v_sub_f32 v{Y + r}, 0, v5')
                else:
                    a(f'v_mov_b32 v{Y + r}, v5')
    twiddle(a, DR, DI, TW, P, True, 1, ST, hook=yinit)
    a('s_waitcnt lgkmcnt(0)')
    for q in range(4):
        a(f'v_mfma_f32_32x32x16_bf16 {vr(Y, 16)}, {vr(P + 4*q, 4)}, {vr(C2 + 4*q, 4)}, {vr(Y, 16)}')
    if stamp:
        a('s_memtime s[56:57]')
    a('s_waitcnt vmcnt(0)')
    XF = DR
    for c in range(8):
        a(f'v_lshlrev_b32 v{XF + 2*c}, 16, v{XR + c}')
        a(f'v_and_b32 v{XF + 2*c + 1}, 0xffff0000, v{XR + c}')
    for c in range(8):
        a(f'v_cvt_pk_bf16_f32 v{ZR + c}, v{Y + 2*c}, v{Y + 2*c + 1}')
    for c in range(8):
        a(f'v_lshlrev_b32 v{Y + 2*c}, 16, v{ZR + c}')
        a(f'v_and_b32 v{Y + 2*c + 1}, 0xffff0000, v{ZR + c}')
    for c in range(8):
        a(f'v_pk_add_f32 {vr(XF + 2*c, 2)}, {vr(XF + 2*c, 2)}, {vr(Y + 2*c, 2)}')
    for c in range(8):
        a(f'v_cvt_pk_bf16_f32 v{XR + c}, v{XF + 2*c}, v{XF + 2*c + 1}')
    for c in range(8):
        a(f'v_lshlrev_b32 v{XF + 2*c}, 16, v{XR + c}')
        a(f'v_and_b32 v{XF + 2*c + 1}, 0xffff0000, v{XR + c}')
    for c in range(4):
        a(f'v_permlane16_swap_b32 v{XR + c}, v{XR + 4 + c}')
    a(f'buffer_store_dwordx4 {vr(XR, 4)}, v{vXS}, s[{S1}:{S1+3}], s{sRow} offen{SC1}')
    a(f'buffer_store_dwordx4 {vr(XR + 4, 4)}, v{vXS}, s[{S1}:{S1+3}], s{sRow} offen offset:1024{SC1}')
    ln_stats(a, XF, ST, None)
    a(f'v_add_f32 v{ST}, v{ST}, v{ST + 1}')
    wave_reduce(a, [ST, ST + 2], [24, 26])
    a('s_mov_b32 s25, 0')
    ln_finish(a, 24, 25, 26, ST)
    for c in range(8):
        a(f'v_pk_fma_f32 {vr(XF + 2*c, 2)}, {vr(XF + 2*c, 2)}, {vr(ST,2)}, {vr(ST+2,2)} op_sel_hi:[1,0,0]')
    for i, c in enumerate([0, 1, 4, 5, 2, 3, 6, 7]):
        a(f'v_cvt_pk_bf16_f32 v{ZR + i}, v{XF + 2*c}, v{XF + 2*c + 1}')
    a(f's_mov_b32 s{sT0}, {16 << 14}')
    for c in range(4):
        a(f'v_permlane16_swap_b32 v{ZR + c}, v{ZR + 4 + c}')
    a(f'buffer_store_dwordx4 {vr(ZR, 4)}, v{vLN}, s[{SL}:{SL+3}], 0 offen{SC1}')
    a(f'buffer_store_dwordx4 {vr(ZR + 4, 4)}, v{vLN}, s[{SL}:{SL+3}], s{sT0} offen{SC1}')
    if stamp:
        stamp_out(a, sW, 36)
    a.label(f'{base}_end')
    a('s_endpgm')
    items = [(KA_WG, PF1 + PF2, PF3), (KA_WU, PF1 + PF2, PF3)]
    prefetch_role(a, f'{base}_pf', f'{base}_end', items)
    return (''.join(descriptor(n, 128, 72, 128) for n in names), [(n, 256 + PF_WGS * (n == names[0]), 512, P3_LDS) for n in names])
```

```python
from build import *
from gen_g2f import *
from gen_p import gen_fin
from gen_p2 import *
import functools
P = functools.partial
LIST = ['p1a_kernel', 'p2a_kernel', 'p3a_kernel', 'g1_kernel', 'g2a_kernel', 'p1b_kernel', 'p2b_kernel', 'p3b_kernel', 'g1_kernel', 'g2b_kernel']
LIST_FIN = LIST[:-1] + ['g2a_kernel', 'fin_kernel']
GENS = (gen_p1, gen_p2, gen_p3, gen_g1, gen_g2f)
if __name__ == '__main__':
    assemble(GENS, LIST, 'full.s')
    assemble([P(g, stamp=True) for g in GENS], LIST, 'full_st.s')
    assemble([P(g, stamp=True) for g in GENS + (gen_fin,)], LIST_FIN, 'fin_st.s')
```

```python
from asmlib import *

NSPLIT = 2
WS_Z, WS_X1, WS_LNX, WS_X2, WS_H = 0, 4 << 20, 8 << 20, 4 << 20, 24 << 20
WS_P = 4 << 20
WS_FL = 12 << 20
WS_P1 = 16 << 20
WS_Z2 = 44 << 20
WS_XB = 48 << 20
WS_PP = 52 << 20
WS_BAR = WS_FL + 32768
LDS_STASH = 4 * 32768 + 64
NSG = 96
H_BYTES = 128 * 112 * 1024
KA_X, KA_WR, KA_WI, KA_WG, KA_WU, KA_WD, KA_OUT, KA_DBG, KA_WS = 0, 8, 16, 32, 40, 48, 56, 64, 72


def kernel_start(a, name):
    a.raw('.p2align 8')
    a.raw(f'.globl {name}')
    a.raw(f'.type {name},@function')
    a.label(name)


def descriptor(name, vgpr, sgpr, accum):
    return f'''.p2align 6
.amdhsa_kernel {name}
  .amdhsa_next_free_vgpr {vgpr}
  .amdhsa_next_free_sgpr {sgpr}
  .amdhsa_accum_offset {accum}
  .amdhsa_group_segment_fixed_size 0
  .amdhsa_kernarg_size 80
  .amdhsa_user_sgpr_count 2
  .amdhsa_user_sgpr_kernarg_segment_ptr 1
  .amdhsa_system_sgpr_workgroup_id_x 1
  .amdhsa_float_denorm_mode_32 3
.end_amdhsa_kernel
'''


def srd(a, d, lo, hi, off, nbytes):
    if off == 0:
        a(f's_mov_b32 s{d}, s{lo}')
        a(f's_mov_b32 s{d+1}, s{hi}')
    else:
        o = off if isinstance(off, str) else hex(off)
        a(f's_add_u32 s{d}, s{lo}, {o}')
        a(f's_addc_u32 s{d+1}, s{hi}, 0')
    a(f's_mov_b32 s{d+2}, {hex(nbytes)}')
    a(f's_mov_b32 s{d+3}, 0x20000')


def f32hex(x):
    import struct
    return hex(struct.unpack('<I', struct.pack('<f', x))[0])


def stamp_out(a, sW, ws, alt=None):
    a(f'''
    s_waitcnt vmcnt(0)
    s_memtime s[58:59]
    s_memrealtime s[60:61]
    s_load_dword s63, s[0:1], {KA_DBG}
    s_waitcnt lgkmcnt(0)
    s_bfe_u32 s63, s63, 0x50009
    s_lshl_b32 s63, s63, 17
    s_lshl_b32 s62, s2, 3
    s_add_u32 s62, s62, s{sW}
    s_lshl_b32 s62, s62, 6
    s_add_u32 s62, s62, {56 << 20}
    s_add_u32 s62, s62, s63
    ''')
    if alt:
        a(f's_mov_b64 s[58:59], s[{alt}:{alt+1}]')
    srd(a, 68, ws, ws + 1, 's62', 64)
    for i in range(12):
        a(f'v_mov_b32 v{i}, s{50 + i}')
    a('v_mov_b32 v12, 0')
    a('s_mov_b64 exec, 1')
    for i in range(3):
        a(f'buffer_store_dwordx4 v[{4*i}:{4*i+3}], v12, s[68:71], 0 offen offset:{16*i}')


def arrive(a, k, vT, nxt):
    a(f'''
    s_and_b32 s92, s2, 15
    s_lshl_b32 s92, s92, 7
    s_add_u32 s92, s92, {hex(WS_BAR + k * 2048)}
    ''')
    srd(a, 4, 36, 37, 's92', 128)
    a(f'''
    v_lshlrev_b32 v{vT}, 8, v250
    v_mov_b32 v{vT+1}, 1
    s_waitcnt vmcnt(0) lgkmcnt(0)
    s_barrier
    buffer_atomic_add v{vT+1}, v{vT}, s[4:7], 0 offen sc1
    v_mov_b32 v0, v250
    s_branch {nxt}
    ''')


def wait_all(a, k, label, sW, S, vT):
    a(f'''
    s_cmp_eq_u32 s94, 0
    s_cbranch_scc1 {label}_go
    s_cmp_eq_u32 s{sW}, 0
    s_cbranch_scc0 {label}_bar
    ''')
    srd(a, S, 36, 37, WS_BAR + k * 2048, 2048)
    a(f'''
    v_and_b32 v{vT}, 15, v250
    v_lshlrev_b32 v{vT}, 7, v{vT}
    s_mov_b32 s92, 0x10000
    ''')
    a.label(f'{label}_poll')
    a(f'''
    buffer_load_dword v{vT+1}, v{vT}, s[{S}:{S+3}], 0 offen sc1
    s_sub_u32 s92, s92, 1
    s_cmp_eq_u32 s92, 0
    s_cbranch_scc1 {label}_bar
    s_waitcnt vmcnt(0)
    v_cmp_gt_u32 vcc, 16, v{vT+1}
    s_cmp_lg_u64 vcc, 0
    s_cbranch_scc1 {label}_poll
    ''')
    a.label(f'{label}_bar')
    a('s_barrier')
    a.label(f'{label}_go')
```

```python
from gen_common import *
from gen_g2f import gen_g2f, G2F_LDS
import math

G1_ST = 31776
G1_GOFF, G1_UOFF, G1_JUNK = 16384, 23568, 30752
G1_NST = 4
G1_LDS = G1_ST * G1_NST


def gen_g1(a, name='g1_kernel', dma_at=(2, 9, 16, 23), rd_start=0, rd_step=1, prio=False, no_dma=False, no_rd=False, stamp=False, no_bar=False, same_tile=False, w_al=False, dma_sel=(0,1,2,3), lin_w=False, no_mfma=False, stamp_pro=False, trace=False, st_flags=' sc1', pf_wd=True, agpr=False, mt_major=False, w128=False, snake=True, merge=False, pk=True, fused=None):
    for s in range(448):
        assert (s * 4682) >> 16 == s // 14
    SA, SG, SU, SH = 4, 8, 12, 16
    sW, sMT, sNT, sOA, sOW, sMA, sMG, sMU, sCNT = 20, 21, 22, 23, 24, 25, 26, 27, 28
    sT0, sT1, sT2 = 29, 30, 31
    ACC = 0
    XF = [112, 128]
    WF = [144, 172]
    vX, vG, vM = [200, 201], [202, 203], [204, 205]
    vDA, vDW = 206, 207
    vL, vT0, vT1, vT2, vT3 = 208, 209, 210, 211, 212
    if agpr:
        XF, WF = [0, 16], [32, 60]
        vX, vG, vM = [88, 89], [90, 91], [92, 93]
        vDA, vDW = 94, 95
        vL, vT0, vT1, vT2, vT3 = 96, 97, 98, 99, 100
    acc = lambda mt, t: ACC + (mt * 7 + t) * 4

    lin_w_code = f'''s_mul_i32 s{sT0}, s{sNT}, {32*7168}
    s_lshl_b32 s{sT1}, s{sW}, 10
    s_add_u32 s{sT0}, s{sT0}, s{sT1}
    s_cmp_eq_u32 s{sW}, 7
    s_cselect_b32 s{sT0}, 0x40000000, s{sT0}
    v_lshlrev_b32 v{vDW}, 4, v{vL}
    v_add_u32 v{vDW}, s{sT0}, v{vDW}''' if lin_w else ''
    wstep = 7168 if lin_w else 32 * 7168
    if fused:
        for li, nm in enumerate(fused):
            kernel_start(a, nm)
            if stamp:
                a('s_memtime s[50:51]')
                a('s_memrealtime s[52:53]')
            a(f's_mov_b32 s85, {li}')
            a('s_mov_b32 s94, 0')
            a(f's_branch {name}_body')
        a.label(f'{name}_fused')
        a('s_mov_b32 s85, 1')
        a.label(f'{name}_body')
    else:
        kernel_start(a, name)
    a(f'''
    s_cmp_ge_u32 s2, 256
    s_cbranch_scc1 {name}_end
    {'s_memtime s[50:51]' if stamp and not fused else ''}
    {'s_memrealtime s[52:53]' if stamp and not fused else ''}
    s_load_dwordx4 s[32:35], s[0:1], {KA_WG}
    s_load_dwordx2 s[36:37], s[0:1], {KA_WS}
    s_load_dwordx4 s[44:47], s[0:1], {KA_WD}
    v_lshrrev_b32 v{vT0}, 6, v0
    v_and_b32 v{vL}, 63, v0
    v_readfirstlane_b32 s{sW}, v{vT0}
    s_and_b32 s{sT0}, s2, 7
    s_lshr_b32 s{sT1}, s2, 3
    s_and_b32 s{sMT}, s{sT0}, 1
    s_lshl_b32 s{sMT}, s{sMT}, 2
    s_and_b32 s{sT2}, s{sT1}, 3
    s_add_u32 s{sMT}, s{sMT}, s{sT2}
    s_lshr_b32 s{sNT}, s{sT0}, 1
    s_lshl_b32 s{sNT}, s{sNT}, 3
    s_lshr_b32 s{sT2}, s{sT1}, 2
    s_add_u32 s{sNT}, s{sNT}, s{sT2}
    s_lshl_b32 s{sMA}, s{sW}, 11
    v_lshlrev_b32 v{vDA}, 4, v{vL}
    v_add_u32 v{vDA}, s{sMA}, v{vDA}
    s_lshl_b32 s{sT0}, s{sW}, 6
    v_add_u32 v{vT0}, s{sT0}, v{vL}
    v_mul_u32_u24 v{vT1}, 4682, v{vT0}
    v_lshrrev_b32 v{vT1}, 16, v{vT1}
    v_mul_u32_u24 v{vT2}, 14, v{vT1}
    v_sub_u32 v{vT2}, v{vT0}, v{vT2}
    v_mul_u32_u24 v{vT1}, 7168, v{vT1}
    v_lshl_add_u32 v{vDW}, v{vT2}, 4, v{vT1}
    s_mul_i32 s{sT0}, s{sNT}, {0 if same_tile else (256 if w_al else 224)}
    s_lshl_b32 s{sMG}, s{sW}, 10
    s_add_u32 s{sMU}, s{sMG}, {G1_UOFF}
    s_add_u32 s{sMG}, s{sMG}, {G1_GOFF}
    s_cmp_eq_u32 s{sW}, 7
    s_cselect_b32 s{sT0}, 0x40000000, s{sT0}
    s_cselect_b32 s{sMG}, {G1_JUNK}, s{sMG}
    s_cselect_b32 s{sMU}, {G1_JUNK}, s{sMU}
    v_add_u32 v{vDW}, s{sT0}, v{vDW}
    {lin_w_code}
    s_lshl_b32 s{sT0}, s{sMT}, 19
    {f's_mov_b32 s{sT0}, 0' if same_tile else ''}
    s_add_u32 s{sT0}, s{sT0}, {hex(WS_LNX)}
    s_waitcnt lgkmcnt(0)
    ''')
    if stamp_pro:
        a('s_memtime s[54:55]')
    srd(a, SA, 36, 37, f's{sT0}', 512 * 1024)
    srd(a, SG, 32, 33, 0, 1024 * 3584 * 2)
    srd(a, SU, 34, 35, 0, 1024 * 3584 * 2)
    srd(a, SH, 36, 37, WS_H, H_BYTES)
    a(f's_mov_b32 s{sOA}, 0')
    a(f's_mov_b32 s{sOW}, 0')

    def dma_ops(slot):
        b = slot * G1_ST
        return [
            [f's_add_u32 m0, s{sMA}, {b}', f'buffer_load_dwordx4 v{vDA}, s[{SA}:{SA+3}], s{sOA} offen lds'],
            [f'buffer_load_dwordx4 v{vDA}, s[{SA}:{SA+3}], s{sOA} offen offset:1024 lds', f's_add_u32 s{sOA}, s{sOA}, 16384'],
            [f's_add_u32 m0, s{sMG}, {b}', f'buffer_load_dwordx4 v{vDW}, s[{SG}:{SG+3}], s{sOW} offen lds'],
            [f's_add_u32 m0, s{sMU}, {b}', f'buffer_load_dwordx4 v{vDW}, s[{SU}:{SU+3}], s{sOW} offen lds',
             f's_add_u32 s{sOW}, s{sOW}, {wstep}'],
        ]

    def emit(groups):
        for grp in groups:
            for ins in grp:
                a(ins)

    if fused:
        emit(dma_ops(0)[2:] + dma_ops(1)[2:])
    else:
        emit(dma_ops(0))
    if stamp_pro:
        a('s_memtime s[56:57]')
    a(f'''
    v_and_b32 v{vT0}, 15, v{vL}
    v_lshrrev_b32 v{vT1}, 4, v{vL}
    v_lshrrev_b32 v{vT2}, 2, v{vT0}
    v_sub_u32 v{vT3}, 0, v{vT2}
    v_and_b32 v{vT3}, 3, v{vT3}
    v_xor_b32 v{vT3}, v{vT3}, v{vT1}
    v_lshlrev_b32 v{vT3}, 4, v{vT3}
    v_lshl_add_u32 v{vX[0]}, v{vT0}, 6, v{vT3}
    s_and_b32 s{sT0}, s{sW}, 3
    s_lshl_b32 s{sT0}, s{sT0}, 12
    v_add_u32 v{vX[0]}, s{sT0}, v{vX[0]}
    v_lshrrev_b32 v{vT3}, 1, v{vT1}
    v_lshl_add_u32 v{vT2}, v{vT3}, 4, v{vT2}
    v_and_b32 v{vT3}, 1, v{vT1}
    v_lshl_add_u32 v{vT2}, v{vT3}, 2, v{vT2}
    v_mul_u32_u24 v{vT2}, 224, v{vT2}
    s_lshr_b32 s{sT0}, s{sW}, 2
    s_mul_i32 s{sT0}, s{sT0}, 112
    v_add_u32 v{vT2}, s{sT0}, v{vT2}
    v_and_b32 v{vT3}, 3, v{vL}
    v_lshl_add_u32 v{vG[0]}, v{vT3}, 3, v{vT2}
    v_and_b32 v{vT3}, 1, v{vL}
    v_lshl_add_u32 v{vM[0]}, v{vT3}, 3, v{vT2}
    v_bfe_u32 v{vT3}, v{vL}, 1, 1
    v_mul_u32_u24 v{vT3}, {G1_UOFF - G1_GOFF}, v{vT3}
    v_add_u32 v{vM[0]}, v{vM[0]}, v{vT3}
    v_add_u32 v{vX[1]}, {2 * G1_ST}, v{vX[0]}
    v_add_u32 v{vG[1]}, {2 * G1_ST}, v{vG[0]}
    v_add_u32 v{vM[1]}, {2 * G1_ST}, v{vM[0]}
    ''')
    if fused:
        wait_all(a, 2, f'{name}_w', sW, 40, vT0)
        emit(dma_ops(0)[:2] + dma_ops(1)[:2])
    else:
        emit(dma_ops(1))

    def read_ops(slot, p):
        hi, b = slot >> 1, (slot & 1) * G1_ST
        ops = []
        xs = [f'ds_read_b128 {vr(XF[p] + 4 * mt, 4)}, v{vX[hi]} offset:{b + mt * 1024}' for mt in range(4)]
        ws = []
        for t in range(7):
            for jj in range(2):
                if t < 6:
                    off = b + (G1_UOFF if t & 1 else G1_GOFF) + (t >> 1) * 32 + jj * 8 * 224
                    ad = vG[hi]
                else:
                    off = b + G1_GOFF + 96 + jj * 8 * 224
                    ad = vM[hi]
                ws.append(f'ds_read_b64_tr_b16 {vr(WF[p] + 4 * t + 2 * jj, 2)}, v{ad} offset:{off}')
        if w128:
            ws = [f'ds_read_b128 {vr(WF[p] + 4 * t, 4)}, v{vX[hi]} offset:{b + 4096 + t * 1024}' for t in range(7)]
        return xs + ws

    def mfmas(p, first=False):
        out = []
        order = [(t, mt) for t in range(7) for mt in range(4)]
        if mt_major:
            order = [(t, mt) for mt in range(4) for t in range(7)]
        if snake:
            order = [(t, mt if t % 2 == 0 else 3 - mt) for t in range(7) for mt in range(4)]
        rr = ar if agpr else vr
        for (t, mt) in order:
            c = '0' if first else rr(acc(mt, t), 4)
            out.append(f'v_mfma_f32_16x16x32_bf16 {rr(acc(mt, t), 4)}, {vr(WF[p] + 4 * t, 4)}, {vr(XF[p] + 4 * mt, 4)}, {c}')
        return out

    a(f's_waitcnt vmcnt({2 if fused else 4})')
    a('s_barrier')
    for ins in read_ops(0, 0):
        a(ins)
    if stamp and not stamp_pro and not fused:
        a('s_memtime s[54:55]')
    if stamp_pro:
        a('s_memtime s[68:69]')
    a('s_waitcnt lgkmcnt(0)')
    mf = mfmas(0, True)
    dm = dma_ops(2) + dma_ops(3)
    for i in range(12):
        a(mf[i])
        if i % 3 != 2:
            emit([dm.pop(0)])
    assert not dm
    a('s_waitcnt vmcnt(8)')
    a('s_barrier')
    rds, dm = read_ops(1, 1), dma_ops(0)
    for i in range(12, 28):
        a(mf[i])
        if rds:
            a(rds.pop(0))
        if i < 15 and rds:
            a(rds.pop(0))
        if i in (16, 19, 22, 25):
            emit([dm.pop(0)])
    assert not rds and not dm

    def step(u, dma, wait, reads, pf=False, more=None):
        p = u & 1
        a(f's_waitcnt vmcnt({wait}) lgkmcnt(0)')
        if reads:
            a('s_barrier')
        rds = read_ops((u + 1) % G1_NST, p ^ 1) if reads else []
        dms = dma_ops(u) if dma else []
        if pf:
            dms = [[f's_add_u32 m0, s{sMA}, {G2F_LDS if fused else u * G1_ST}', f'buffer_load_dwordx4 v{vDA}, s[{SG}:{SG+3}], s{sOA} offen lds'],
                   [f'buffer_load_dwordx4 v{vDA}, s[{SG}:{SG+3}], s{sOA} offen offset:1024 lds'],
                   [f'buffer_load_dwordx4 v{vDA}, s[{SG}:{SG+3}], s{sOW} offen lds'],
                   [f'buffer_load_dwordx4 v{vDA}, s[{SG}:{SG+3}], s{sOW} offen offset:1024 lds']]
        at = dma_at
        if more:
            dms = more + dms
            at = (1, 4, 7, 10, 14, 18, 22, 25)
        for i, m in enumerate(mfmas(p)):
            a(m)
            if dms and i in at:
                emit([dms.pop(0)])
            if rds:
                a(rds.pop(0))
        assert not rds and not dms

    a(f's_mov_b32 s{sCNT}, 7')
    a.raw('.p2align 6')
    a.label(f'{name}_loop')
    if trace:
        a('s_memtime s[70:71]')
        a('s_memrealtime s[72:73]')
        a('s_waitcnt lgkmcnt(0)')
        a(f's_sub_u32 s74, 7, s{sCNT}')
        a(f'v_cmp_eq_u32 vcc, s74, v{vL}')
        a('v_mov_b32 v213, s70')
        a('v_cndmask_b32 v214, v214, v213, vcc')
        a('v_mov_b32 v213, s72')
        a('v_cndmask_b32 v215, v215, v213, vcc')
    for u in (1, 2, 3, 0):
        step(u, True, 8, True)
    a(f's_sub_u32 s{sCNT}, s{sCNT}, 1')
    a(f's_cmp_lg_u32 s{sCNT}, 0')
    a(f's_cbranch_scc1 {name}_loop')
    if pf_wd:
        srd(a, SG, 44, 45, 0, 1024 * 3584 * 2)
        a(f's_lshl_b32 s{sOA}, s2, 15')
        a(f's_add_u32 s{sOW}, s{sOA}, 16384')
    if fused:
        bd = gen_g2f(a, fused, part='early')
        step(1, False, 8, True)
        step(2, False, 0, True, pf=True, more=bd)
        step(3, False, 63, False)
    else:
        step(1, False, 8, True, pf=pf_wd)
    if not merge and not fused:
        step(2, False, 8 if pf_wd else 4, True)
        step(3, False, 63, False)

    if stamp and not stamp_pro and not fused:
        a('s_memtime s[56:57]')
    if agpr:
        stamp_out(a, sW, 36)
        a.label(f'{name}_end')
        a('s_endpgm')
        return descriptor(name, 104 + 112, 80, 104), (name, 256, 512, G1_LDS)
    c1 = -2.0 * math.log2(math.e) * math.sqrt(2.0 / math.pi)
    c2 = c1 * 0.044715
    vC1, vONE, vTMP, vO = 216, 218, 220, 228
    vS1, vS2, vS3 = 213, 214, 215
    a(f'''
    s_mov_b32 s38, {f32hex(c2)}
    s_mov_b32 s39, {f32hex(c2)}
    v_mov_b32 v{vC1}, {f32hex(c1)}
    v_mov_b32 v{vC1+1}, {f32hex(c1)}
    v_mov_b32 v{vONE}, 1.0
    v_mov_b32 v{vONE+1}, 1.0
    s_and_b32 s{sT0}, s{sW}, 3
    s_lshl_b32 s{sT0}, s{sT0}, 2
    s_lshl_b32 s{sT1}, s{sMT}, 4
    s_add_u32 s{sT0}, s{sT0}, s{sT1}
    s_mul_i32 s{sT0}, s{sT0}, {112 * 1024}
    s_lshr_b32 s{sT1}, s{sW}, 2            ; nh
    s_lshl_b32 s40, s{sNT}, 1
    s_add_u32 s40, s40, s{sT1}
    s_and_b32 s40, s40, {64 // NSPLIT - 1}
    s_lshr_b32 s43, s{sNT}, {4 if NSPLIT == 2 else 3}
    s_mul_i32 s43, s43, {112 // NSPLIT}
    s_add_u32 s40, s40, s43
    s_lshl_b32 s40, s40, 10
    s_add_u32 s40, s40, s{sT0}
    s_and_b32 s41, s{sNT}, {32 // NSPLIT - 1}
    s_add_u32 s41, s41, s43
    s_add_u32 s41, s41, {64 // NSPLIT}
    s_lshl_b32 s41, s41, 10
    s_add_u32 s41, s41, s{sT0}             ; type-2
    s_lshr_b32 s42, s{sNT}, 1
    s_and_b32 s42, s42, {16 // NSPLIT - 1}
    s_add_u32 s42, s42, s43
    s_add_u32 s42, s42, {96 // NSPLIT}
    s_lshl_b32 s42, s42, 10
    s_add_u32 s42, s42, s{sT0}             ; type-3
    v_lshlrev_b32 v{vS1}, 4, v{vL}
    v_and_b32 v{vT1}, 15, v{vL}
    v_lshlrev_b32 v{vT1}, 4, v{vT1}
    v_bfe_u32 v{vT0}, v{vL}, 4, 1
    v_mul_u32_u24 v{vT2}, {112 * 1024}, v{vT0}
    v_lshrrev_b32 v{vT3}, 5, v{vL}
    v_lshl_add_u32 v{vS2}, v{vT3}, 8, v{vT2}
    v_add_u32 v{vS2}, v{vS2}, v{vT1}
    s_lshl_b32 s{sT2}, s{sT1}, 9
    v_add_u32 v{vS2}, s{sT2}, v{vS2}
    v_lshl_add_u32 v{vT0}, v{vT0}, 1, v{vT3}
    v_mul_u32_u24 v{vS3}, {112 * 1024}, v{vT0}
    v_add_u32 v{vS3}, v{vS3}, v{vT1}
    s_and_b32 s{sT2}, s{sNT}, 1
    s_lshl_b32 s{sT2}, s{sT2}, 1
    s_add_u32 s{sT2}, s{sT2}, s{sT1}
    s_lshl_b32 s{sT2}, s{sT2}, 8
    v_add_u32 v{vS3}, s{sT2}, v{vS3}
    ''')

    def gelu4(g, u, out):
        T, P = vTMP, vTMP + 4
        L = []
        if not pk_now[0]:
            L += [f'v_mul_f32 v{T+h}, v{g+h}, v{g+h}' for h in range(4)]
            L += [f'v_fma_f32 v{T+h}, v{T+h}, s38, v{vC1}' for h in range(4)]
            L += [f'v_mul_f32 v{T+h}, v{T+h}, v{g+h}' for h in range(4)]
            L += [f'v_exp_f32 v{T+h}, v{T+h}' for h in range(4)]
            L += [f'v_mul_f32 v{P+h}, v{g+h}, v{u+h}' for h in range(4)]
            L += [f'v_add_f32 v{T+h}, 1.0, v{T+h}' for h in range(4)]
            L += [f'v_rcp_f32 v{T+h}, v{T+h}' for h in range(4)]
            L += [f'v_mul_f32 v{P+h}, v{P+h}, v{T+h}' for h in range(4)]
            L.append(f'v_cvt_pk_bf16_f32 v{out}, v{P}, v{P+1}')
            L.append(f'v_cvt_pk_bf16_f32 v{out+1}, v{P+2}, v{P+3}')
            return L
        for h in (0, 2):
            L.append(f'v_pk_mul_f32 {vr(T+h,2)}, {vr(g+h,2)}, {vr(g+h,2)}')
        for h in (0, 2):
            L.append(f'v_pk_fma_f32 {vr(T+h,2)}, {vr(T+h,2)}, s[38:39], {vr(vC1,2)}')
        for h in (0, 2):
            L.append(f'v_pk_mul_f32 {vr(T+h,2)}, {vr(T+h,2)}, {vr(g+h,2)}')
        for h in range(4):
            L.append(f'v_exp_f32 v{T+h}, v{T+h}')
        for h in (0, 2):
            L.append(f'v_pk_mul_f32 {vr(P+h,2)}, {vr(g+h,2)}, {vr(u+h,2)}')
        for h in (0, 2):
            L.append(f'v_pk_add_f32 {vr(T+h,2)}, {vr(T+h,2)}, {vr(vONE,2)}')
        for h in range(4):
            L.append(f'v_rcp_f32 v{T+h}, v{T+h}')
        for h in (0, 2):
            L.append(f'v_pk_mul_f32 {vr(P+h,2)}, {vr(P+h,2)}, {vr(T+h,2)}')
        L.append(f'v_cvt_pk_bf16_f32 v{out}, v{P}, v{P+1}')
        L.append(f'v_cvt_pk_bf16_f32 v{out+1}, v{P+2}, v{P+3}')
        return L

    M3 = vO + 16
    pk_now = [pk]

    def epi(mt):
        L = []
        o = vO + 4 * (mt & 1)
        o2 = vO + 8 + 4 * (mt >> 1)
        L += gelu4(acc(mt, 0), acc(mt, 1), o)
        L += gelu4(acc(mt, 2), acc(mt, 3), o + 2)
        L.append(f'buffer_store_dwordx4 {vr(o,4)}, v{vS1}, s[{SH}:{SH+3}], s40 offen{st_flags}')
        L += gelu4(acc(mt, 4), acc(mt, 5), o2 + 2 * (mt & 1))
        if mt & 1:
            L.append(f'v_permlane16_swap_b32 v{o2}, v{o2+2}')
            L.append(f'v_permlane16_swap_b32 v{o2+1}, v{o2+3}')
            L.append(f'buffer_store_dwordx4 {vr(o2,4)}, v{vS2}, s[{SH}:{SH+3}], s41 offen{st_flags}')
            L.append(f's_add_u32 s41, s41, {2 * 112 * 1024}')
            for r in range(4):
                L.append(f'v_permlane32_swap_b32 v{acc(mt-1,6)+r}, v{acc(mt,6)+r}')
            L += gelu4(acc(mt - 1, 6), acc(mt, 6), M3 + 2 * (mt >> 1))
        if mt < 3:
            L.append(f's_add_u32 s40, s40, {112 * 1024}')
        else:
            L.append(f'v_permlane16_swap_b32 v{M3}, v{M3+2}')
            L.append(f'v_permlane16_swap_b32 v{M3+1}, v{M3+3}')
            L.append(f'buffer_store_dwordx4 {vr(M3,4)}, v{vS3}, s[{SH}:{SH+3}], s42 offen{st_flags}')
        return L

    if merge:
        a(f's_waitcnt vmcnt({8 if pf_wd else 4}) lgkmcnt(0)')
        a('s_barrier')
        rd = read_ops(3, 1)
        rd = [rd[0]] + rd[4:] + rd[1:4]
        mm = lambda p, mt, t: f'v_mfma_f32_16x16x32_bf16 {vr(acc(mt, t), 4)}, {vr(WF[p] + 4 * t, 4)}, {vr(XF[p] + 4 * mt, 4)}, {vr(acc(mt, t), 4)}'
        for t in range(7):
            a(mm(0, 0, t))
            for _ in range(3):
                if rd:
                    a(rd.pop(0))
        for t in range(7):
            a(f's_waitcnt lgkmcnt({15 - 2 * t})')
            a(mm(1, 0, t))
        a('s_waitcnt lgkmcnt(0)')
        for mt in range(1, 4):
            L = epi(mt - 1)
            n = len(L)
            ms = [mm(p, mt, t) for p in range(2) for t in range(7)]
            for i, m in enumerate(ms):
                a(m)
                for x in L[n * i // 14:n * (i + 1) // 14]:
                    a(x)
        for x in epi(3):
            a(x)
    else:
        for mt in range(4):
            for x in epi(mt):
                a(x)
    if fused:
        a(f'''
        s_lshl_b32 s{sT0}, s{sMT}, 1
        s_lshr_b32 s{sT1}, s{sNT}, 4
        s_add_u32 s{sT0}, s{sT0}, s{sT1}
        s_lshl_b32 s{sT0}, s{sT0}, 7
        s_add_u32 s{sT0}, s{sT0}, {hex(WS_FL + 16384)}
        ''')
        srd(a, SA, 36, 37, f's{sT0}', 128)
        a(f'''
        s_lshl_b32 s{sT0}, s{sW}, 8
        v_lshlrev_b32 v0, 8, v{vL}
        v_add_u32 v0, s{sT0}, v0
        v_mov_b32 v1, 1
        s_waitcnt vmcnt(0)
        s_barrier
        buffer_atomic_add v1, v0, s[{SA}:{SA+3}], 0 offen sc1
        ''')
        if stamp:
            a('s_memtime s[54:55]')
        gen_g2f(a, fused, stamp=stamp, part='late')
        a.label(f'{name}_end')
        a('s_endpgm')
        return (''.join(descriptor(n, 256, NSG, 256) for n in fused), [(n, 256, 512, G2F_LDS + 16384 + 1024) for n in fused])
    if trace:
        a('s_memtime s[70:71]')
        a('s_memrealtime s[72:73]')
        a('s_load_dword s63, s[0:1], 64')
        a('s_waitcnt lgkmcnt(0)')
        a('v_writelane_b32 v214, s70, 7')
        a('v_writelane_b32 v215, s72, 7')
        a('v_writelane_b32 v214, s50, 8')
        a('v_writelane_b32 v215, s52, 8')
        a('s_bfe_u32 s63, s63, 0x50009')
        a('s_lshl_b32 s63, s63, 20')
        a('s_lshl_b32 s62, s2, 3')
        a(f's_add_u32 s62, s62, s{sW}')
        a('s_lshl_b32 s62, s62, 9')
        a('s_add_u32 s62, s62, s63')
        a(f's_add_u32 s62, s62, {44 << 20}')
        srd(a, 64, 36, 37, 's62', 512)
        a(f'v_lshlrev_b32 v213, 3, v{vL}')
        a('buffer_store_dwordx2 v[214:215], v213, s[64:67], 0 offen')
    if stamp:
        stamp_out(a, sW, 36, 68 if stamp_pro else None)
    a.label(f'{name}_end')
    a('s_endpgm')
    return descriptor(name, 248, 80, 248), (name, 256, 512, G1_LDS)
```

```python
from gen_common import *

G2_ST = 32768
G2_ROLE = 4 * G2_ST
G2F_LDS = 4 * G2_ST + 64
MT_STRIDE = 112 * 1024


def gen_g2f(a, names=('g2a_kernel', 'g2b_kernel'), stamp=False, dma_at=(0, 3, 6, 9), st_flags=' sc1', part=None):
    SH, SD, SR, SO, SF = 4, 8, 12, 16, 64
    sW, sM, sN, sA, sLo, sHiD, sStep, sIt, sMA, sK = 20, 21, 22, 23, 24, 25, 26, 27, 28, 44
    sT0, sT1, sT2, sLo2, sLo3, sHi, sRole, sMode, sTk = 29, 30, 31, 42, 43, 45, 46, 47, 49
    acc = lambda q, t: (q * 4 + t) * 4
    HF, WF = [64, 80], [96, 112]
    vH, vH2 = [128, 129], [146, 147]
    vWt = [[130, 131, 132, 133], [134, 135, 136, 137]]
    vDA, vDB, vL, vT0, vT1, vT2, vT3, vO = 138, 139, 140, 141, 142, 143, 144, 145
    vTk, vRes = 148, 152
    if part:
        SD, sLo, sHiD, sStep, sHi, sLo2, sLo3, sK, sM, sN, sMode = 72, 76, 77, 78, 79, 80, 81, 82, 83, 84, 85
        sT0, sT1, sT2, sMA, sTk, sRole = 86, 87, 88, 25, 89, 90
        vDB = 255
        if part == 'early':
            vL, vT0, vT1, vT2 = 208, 252, 253, 254
    base = names[0][:-8] + ('_g2' if part else '')
    for li, name in enumerate(names if not part else ()):
        kernel_start(a, name)
        if stamp:
            a('s_memtime s[50:51]\ns_memrealtime s[52:53]')
        a(f's_load_dwordx2 s[36:37], s[0:1], {KA_WS}')
        a(f's_load_dwordx4 s[32:35], s[0:1], {KA_WD}')
        a(f's_mov_b32 s{sMode}, {li}')
        if li == 0:
            a(f's_branch {base}_body')
    if not part:
        a.label(f'{base}_body')
        a(f'''
        s_cmp_ge_u32 s2, 256
        s_cbranch_scc1 {base}_end
        v_lshrrev_b32 v{vT0}, 6, v0
        v_and_b32 v{vL}, 63, v0
        v_readfirstlane_b32 s{sW}, v{vT0}
        ''')
    early = f'''
    s_and_b32 s{sT0}, s2, 7
    s_lshr_b32 s{sT1}, s2, 3
    s_and_b32 s{sK}, s{sT0}, 1
    s_lshr_b32 s{sM}, s{sT0}, 1
    s_lshl_b32 s{sM}, s{sM}, 2
    s_and_b32 s{sT2}, s{sT1}, 3
    s_add_u32 s{sM}, s{sM}, s{sT2}
    s_lshr_b32 s{sN}, s{sT1}, 2
    v_lshrrev_b32 v{vT0}, 4, v{vL}
    s_and_b32 s{sT0}, s{sW}, 1
    s_lshl_b32 s{sT0}, s{sT0}, 2
    v_add_u32 v{vT1}, s{sT0}, v{vT0}
    v_lshlrev_b32 v{vT1}, 1, v{vT1}
    v_and_b32 v{vT2}, 15, v{vL}
    v_xor_b32 v{vT1}, v{vT1}, v{vT2}
    v_lshlrev_b32 v{vT1}, 4, v{vT1}
    v_lshl_add_u32 v{vDB}, v{vT0}, 11, v{vT1}
    s_lshl_b32 s{sT0}, s{sN}, 8
    v_add_u32 v{vDB}, s{sT0}, v{vDB}
    s_lshr_b32 s{sT0}, s{sW}, 2            ; ks
    s_and_b32 s{sT1}, s{sW}, 3             ; g
    s_mul_i32 s{sT2}, s{sK}, 1792
    s_mul_i32 s{sLo}, s{sT0}, 56
    s_lshl_b32 s{sLo3}, s{sT1}, 2
    s_add_u32 s{sLo}, s{sLo}, s{sLo3}
    s_add_u32 s{sLo}, s{sLo}, s{sT2}
    s_lshl_b32 s{sLo}, s{sLo}, 11
    s_mul_i32 s{sLo2}, s{sT0}, 112
    s_lshr_b32 s{sLo3}, s{sT1}, 1
    s_mul_i32 s{sLo3}, s{sLo3}, 56
    s_add_u32 s{sLo2}, s{sLo2}, s{sLo3}
    s_and_b32 s{sLo3}, s{sT1}, 1
    s_lshl_b32 s{sLo3}, s{sLo3}, 3
    s_add_u32 s{sLo2}, s{sLo2}, s{sLo3}
    s_add_u32 s{sLo2}, s{sLo2}, s{sT2}
    s_add_u32 s{sLo2}, s{sLo2}, 32
    s_lshl_b32 s{sLo2}, s{sLo2}, 11
    s_mul_i32 s{sLo3}, s{sT0}, 224
    s_mul_i32 s{sT1}, s{sT1}, 56
    s_add_u32 s{sLo3}, s{sLo3}, s{sT1}
    s_add_u32 s{sLo3}, s{sLo3}, s{sT2}
    s_add_u32 s{sLo3}, s{sLo3}, 48
    s_lshl_b32 s{sLo3}, s{sLo3}, 11
    s_mov_b32 s{sHiD}, {16 * 2048 - 1024}
    s_mov_b32 s{sStep}, {112 * 2048}
    '''
    late = f'''
    s_mul_i32 s{sT0}, s{sW}, {MT_STRIDE}
    v_lshlrev_b32 v{vDA}, 4, v{vL}
    v_add_u32 v{vDA}, s{sT0}, v{vDA}
    s_mul_i32 s{sA}, s{sK}, {56 * 1024}
    s_lshl_b32 s{sMA}, s{sW}, 11
    s_lshl_b32 s48, s{sM}, 3
    s_add_u32 s48, s48, s{sN}
    s_lshl_b32 s48, s48, 7
    s_add_u32 s48, s48, {hex(WS_FL)}
    s_lshl_b32 s{sTk}, s{sW}, 1
    s_sub_u32 s{sTk}, s{sMode}, s{sTk}
    v_mov_b32 v{vTk}, 1
    v_lshlrev_b32 v{vTk+1}, 8, v{vL}
    s_mul_i32 s{sT0}, s{sM}, {8 * MT_STRIDE}
    s_add_u32 s{sT0}, s{sT0}, {hex(WS_H)}
    '''

    def b_dma(slot):
        b = slot * G2_ST
        return [[f's_add_u32 m0, s{sMA}, {b + 16384}', f's_add_u32 s{sHi}, s{sLo}, s{sHiD}',
                 f'buffer_load_dwordx4 v{vDB}, s[{SD}:{SD+3}], s{sLo} offen lds'],
                [f'buffer_load_dwordx4 v{vDB}, s[{SD}:{SD+3}], s{sHi} offen offset:1024 lds', f's_add_u32 s{sLo}, s{sLo}, s{sStep}']]

    if part == 'early':
        a(early)
        srd(a, SD, 44, 45, 0, 3584 * 1024 * 2)
        return b_dma(0) + b_dma(1)
    if part:
        a(f'v_mov_b32 v{vL}, v208')
        a('s_mov_b64 s[34:35], s[46:47]')
        for g in b_dma(2) + b_dma(3):
            for ins in g:
                a(ins)
    else:
        a(early)
    a(late)
    if not part:
        a('s_waitcnt lgkmcnt(0)')
        srd(a, SD, 32, 33, 0, 3584 * 1024 * 2)
    srd(a, SH, 36, 37, f's{sT0}', 8 * MT_STRIDE)
    srd(a, SF, 36, 37, 's48', 128)
    a(f'''
    s_cmp_eq_u32 s{sTk}, 1
    s_cbranch_scc0 {base}_noticket
    buffer_atomic_add v{vTk}, v{vTk+1}, s[{SF}:{SF+3}], 0 offen sc0 sc1
    ''')
    a.label(f'{base}_noticket')

    def dma_ops(slot):
        b = slot * G2_ST
        return [
            [f's_add_u32 m0, s{sMA}, {b}', f'buffer_load_dwordx4 v{vDA}, s[{SH}:{SH+3}], s{sA} offen lds'],
            [f'buffer_load_dwordx4 v{vDA}, s[{SH}:{SH+3}], s{sA} offen offset:1024 lds', f's_add_u32 s{sA}, s{sA}, 2048'],
            [f's_add_u32 m0, s{sMA}, {b + 16384}', f's_add_u32 s{sHi}, s{sLo}, s{sHiD}',
             f'buffer_load_dwordx4 v{vDB}, s[{SD}:{SD+3}], s{sLo} offen lds'],
            [f'buffer_load_dwordx4 v{vDB}, s[{SD}:{SD+3}], s{sHi} offen offset:1024 lds', f's_add_u32 s{sLo}, s{sLo}, s{sStep}'],
        ]

    def emit(groups):
        for g in groups:
            for ins in g:
                a(ins)

    if not part:
        emit(dma_ops(0))
    a(f'''
    s_lshr_b32 s{sT0}, s{sW}, 2
    s_bfe_u32 s{sT1}, s{sW}, 0x10001
    s_lshl_b32 s{sT1}, s{sT1}, 13
    s_lshl_b32 s{sT2}, s{sT0}, 10
    s_add_u32 s{sT1}, s{sT1}, s{sT2}
    v_lshlrev_b32 v{vH[0]}, 4, v{vL}
    v_add_u32 v{vH[0]}, s{sT1}, v{vH[0]}
    s_lshl_b32 s{sT2}, s{sT0}, 12
    v_xor_b32 v{vH[0]}, s{sT2}, v{vH[0]}
    v_add_u32 v{vH[1]}, {2 * G2_ST}, v{vH[0]}
    v_xor_b32 v{vH2[0]}, 4096, v{vH[0]}
    v_xor_b32 v{vH2[1]}, 4096, v{vH[1]}
    v_lshrrev_b32 v{vT0}, 4, v{vL}
    v_bfe_u32 v{vT1}, v{vL}, 2, 2
    v_lshlrev_b32 v{vT2}, 11, v{vT0}
    v_lshl_add_u32 v{vT2}, v{vT1}, 8, v{vT2}
    v_and_b32 v{vT3}, 3, v{vL}
    v_lshl_add_u32 v{vT2}, v{vT3}, 3, v{vT2}
    s_lshl_b32 s{sT2}, s{sT0}, 13
    s_add_u32 s{sT2}, s{sT2}, 16384
    v_add_u32 v{vT2}, s{sT2}, v{vT2}
    v_and_b32 v{vT0}, 1, v{vT0}
    v_lshl_add_u32 v{vT1}, v{vT0}, 2, v{vT1}
    s_and_b32 s{sT2}, s{sW}, 1
    s_lshl_b32 s{sT2}, s{sT2}, 2
    v_xor_b32 v{vT1}, s{sT2}, v{vT1}
    ''')
    for t in range(4):
        a(f'v_xor_b32 v{vT0}, {t}, v{vT1}')
        a(f'v_lshl_add_u32 v{vWt[0][t]}, v{vT0}, 5, v{vT2}')
        a(f'v_add_u32 v{vWt[1][t]}, {2 * G2_ST}, v{vWt[0][t]}')
    if not part:
        emit(dma_ops(1))
    else:
        a(f'''
        s_lshr_b32 s{sT0}, s{sM}, 1
        s_lshl_b32 s{sT0}, s{sT0}, 1
        s_add_u32 s{sT0}, s{sT0}, s{sK}
        s_lshl_b32 s{sT0}, s{sT0}, 7
        s_add_u32 s{sT0}, s{sT0}, {hex(WS_FL + 16384)}
        ''')
        srd(a, SR, 36, 37, f's{sT0}', 128)
        a(f'v_mov_b32 v{vT0}, 0')
        a(f's_mov_b32 s{sIt}, 0x10000')
        a.label(f'{base}_wait')
        a(f'''
        buffer_load_dword v{vT1}, v{vT0}, s[{SR}:{SR+3}], 0 offen sc1
        s_sub_u32 s{sIt}, s{sIt}, 1
        s_waitcnt vmcnt(0)
        v_readfirstlane_b32 s{sT2}, v{vT1}
        s_cmp_eq_u32 s{sIt}, 0
        s_cselect_b32 s{sT2}, 16, s{sT2}
        s_cmp_lt_u32 s{sT2}, 16
        s_cbranch_scc1 {base}_wait
        ''')
        for st in range(4):
            emit(dma_ops(st)[:2])

    def read_ops(slot, p):
        hi, b = slot >> 1, (slot & 1) * G2_ST
        xs = [f'ds_read_b128 {vr(HF[p] + 4*q, 4)}, v{vH[hi] if q < 2 else vH2[hi]} offset:{b + (q & 1) * 2048}' for q in range(4)]
        ws = [f'ds_read_b64_tr_b16 {vr(WF[p] + 4*t + 2*jj, 2)}, v{vWt[hi][t]} offset:{b + jj * 1024}' for t in range(4) for jj in range(2)]
        return ws[:2] + xs + ws[2:]

    def mfmas(p, first=False):
        out = []
        for t in range(4):
            for q in (range(4) if t & 1 == 0 else (3, 2, 1, 0)):
                c = '0' if first else vr(acc(q, t), 4)
                out.append(f'v_mfma_f32_16x16x32_bf16 {vr(acc(q, t), 4)}, {vr(WF[p] + 4*t, 4)}, {vr(HF[p] + 4*q, 4)}, {c}')
        return out

    a(f'''
    s_waitcnt vmcnt({6 if part else 4})
    s_cmp_eq_u32 s{sTk}, 1
    s_cbranch_scc0 {base}_norole
    v_mov_b32 v{vTk+1}, {G2_ROLE}
    s_mov_b64 exec, 1
    ds_write_b32 v{vTk+1}, v{vTk}
    s_mov_b64 exec, -1
    s_waitcnt lgkmcnt(0)
    ''')
    a.label(f'{base}_norole')
    a('s_barrier')
    for ins in read_ops(0, 0):
        a(ins)
    if stamp:
        a('s_memtime s[56:57]' if part else 's_memtime s[54:55]')
    a('s_waitcnt lgkmcnt(0)')
    mf = mfmas(0, True)
    dm = dma_ops(2) + dma_ops(3)
    for i in range(8):
        a(mf[i])
        if not part:
            emit([dm[i]])
    a(f's_waitcnt vmcnt({2 if part else 8})')
    a('s_barrier')
    rds, dm = read_ops(1, 1), dma_ops(0)
    for i in range(8, 16):
        a(mf[i])
        a(rds.pop(0))
        if i & 1:
            emit([dm.pop(0)])
        else:
            a(rds.pop(0))
    assert not rds and not dm

    def step(u, dma, wait, reads, extra=()):
        p = u & 1
        a(f's_waitcnt vmcnt({wait}) lgkmcnt(0)')
        if reads:
            a('s_barrier')
        rds = read_ops((u + 1) & 3, p ^ 1) if reads else []
        dms = dma_ops(u) if dma else []
        extra = list(extra)
        for i, m in enumerate(mfmas(p)):
            a(m)
            if dms and i in dma_at:
                emit([dms.pop(0)])
            if rds and i < 12:
                a(rds.pop(0))
            if extra and i & 1:
                a(extra.pop(0))
        assert not rds and not dms and not extra

    a(f's_mov_b32 s{sIt}, 0')
    a.raw('.p2align 6')
    a.label(f'{base}_loop')
    step(1, True, 8, True)
    step(2, True, 8, True)
    step(3, True, 8, True)
    for (it, lo, stp) in [(2, sLo2, 224), (4, sLo3, 448)]:
        a(f's_cmp_eq_u32 s{sIt}, {it}')
        a(f's_cselect_b32 s{sLo}, s{lo}, s{sLo}')
        a(f's_cselect_b32 s{sHiD}, {4 * 2048 - 1024}, s{sHiD}')
        a(f's_cselect_b32 s{sStep}, {stp * 2048}, s{sStep}')
    a(f's_cmp_eq_u32 s{sIt}, 5')
    a(f's_cselect_b32 s{sLo}, 0x40000000, s{sLo}')
    a(f's_cselect_b32 s{sA}, 0x40000000, s{sA}')
    step(0, True, 8, True)
    a(f's_add_u32 s{sIt}, s{sIt}, 1')
    a(f's_cmp_lg_u32 s{sIt}, 6')
    a(f's_cbranch_scc1 {base}_loop')
    pre = f'''s_lshr_b32 s{sT0}, s{sM}, 1
    s_lshl_b32 s{sT0}, s{sT0}, 8
    s_lshl_b32 s{sT1}, s{sM}, 2
    s_bfe_u32 s{sT2}, s{sW}, 0x10001
    s_lshl_b32 s{sT2}, s{sT2}, 1
    s_add_u32 s{sT1}, s{sT1}, s{sT2}
    v_mov_b32 v{vTk+1}, {G2_ROLE}
    ds_read_b32 v{vTk}, v{vTk+1}'''.split('\n')
    pre2 = f'''s_lshr_b32 s{sT2}, s{sW}, 2
    s_add_u32 s{sT1}, s{sT1}, s{sT2}
    s_and_b32 s{sT1}, s{sT1}, 7
    s_add_u32 s{sT0}, s{sT0}, s{sT1}
    s_lshl_b32 s{sT0}, s{sT0}, 11
    s_lshl_b32 s{sT1}, s{sN}, 8
    s_add_u32 s{sT0}, s{sT0}, s{sT1}
    v_readfirstlane_b32 s{sRole}, v{vTk}'''.split('\n')
    step(1, False, 8, True, extra=pre)
    step(2, False, 0, True, extra=pre2)
    a(f'''
    s_and_b32 s{sT1}, s{sW}, 1
    s_lshl_b32 s{sT1}, s{sT1}, 7
    s_add_u32 s{sT0}, s{sT0}, s{sT1}
    v_and_b32 v{vT0}, 15, v{vL}
    v_lshlrev_b32 v{vO}, 14, v{vT0}
    v_bfe_u32 v{vT0}, v{vL}, 4, 1
    v_lshl_add_u32 v{vO}, v{vT0}, 5, v{vO}
    v_lshrrev_b32 v{vT0}, 5, v{vL}
    v_lshl_add_u32 v{vO}, v{vT0}, 4, v{vO}
    v_add_u32 v{vO}, s{sT0}, v{vO}
    s_xor_b32 s{sT1}, s{sK}, 1
    s_and_b32 s{sRole}, s{sRole}, 1
    s_cmp_eq_u32 s{sMode}, 0
    s_cselect_b32 s{sRole}, s{sT1}, s{sRole}
    s_add_u32 s40, s36, {hex(WS_P)}
    s_addc_u32 s41, s37, 0
    s_cmp_eq_u32 s{sMode}, 0
    s_cselect_b32 s34, s40, s34
    s_cselect_b32 s35, s41, s35
    s_mul_i32 s{sT1}, s{sMode}, {WS_PP - WS_P1}
    s_add_u32 s{sT1}, s{sT1}, {hex(WS_P1)}
    s_add_u32 s40, s36, s{sT1}
    s_addc_u32 s41, s37, 0
    s_cmp_eq_u32 s{sRole}, 0
    s_cselect_b32 s34, s40, s34
    s_cselect_b32 s35, s41, s35
    ''')
    srd(a, SO, 34, 35, 0, 4 << 20)
    a(f's_mul_i32 s{sT1}, s{sMode}, {WS_XB - WS_X1}')
    a(f's_add_u32 s{sT1}, s{sT1}, {hex(WS_X1)}')
    srd(a, SR, 36, 37, f's{sT1}', 4 << 20)
    srd(a, SH, 40, 41, 0, 4 << 20)
    a(f's_lshl_b32 s{SR+2}, s{sRole}, 22')
    a(f's_mov_b32 s{sT1}, {128 * 2048}')
    res = [f'buffer_load_dwordx4 {vr(vRes + 8*q + 4*tp, 4)}, v{vO}, s[{SR}:{SR+3}], {"0" if q == 0 else f"s{sT1}"} offen offset:{64*tp}'
           for q in range(2) for tp in range(2)]
    step(3, False, 63, False, extra=res)
    if stamp and not part:
        a('s_memtime s[56:57]')
    a(f'''
    s_lshl_b32 s{sT0}, s{sW}, 13
    v_lshlrev_b32 v{vT0}, 4, v{vL}
    v_add_u32 v{vT0}, s{sT0}, v{vT0}
    v_xor_b32 v{vT1}, {4 << 13}, v{vT0}
    ''')
    for i in range(8):
        a(f'ds_write_b128 v{vT0}, {vr(32 + 4*i, 4)} offset:{i * 1024}')
    a('s_waitcnt lgkmcnt(0)')
    a('s_barrier')
    for i in range(8):
        a(f'ds_read_b128 {vr(64 + 4*i, 4)}, v{vT1} offset:{i * 1024}')
    a(f'''
    s_and_b32 s{sT0}, s{sMode}, s{sRole}
    s_cmp_eq_u32 s{sT0}, 1
    s_cbranch_scc0 {base}_nowait
    s_lshl_b32 s{sT2}, s{sW}, 2
    s_add_u32 s{sT2}, s{sT2}, 64
    v_mov_b32 v{vTk+1}, s{sT2}
    s_mov_b32 s{sIt}, 0x10000
    ''')
    a.label(f'{base}_poll')
    a(f'''
    buffer_load_dword v{vTk}, v{vTk+1}, s[{SF}:{SF+3}], 0 offen sc1
    s_sub_u32 s{sIt}, s{sIt}, 1
    s_waitcnt vmcnt(0)
    v_readfirstlane_b32 s{sT2}, v{vTk}
    s_cmp_eq_u32 s{sIt}, 0
    s_cselect_b32 s{sT2}, 1, s{sT2}
    s_cmp_eq_u32 s{sT2}, 0
    s_cbranch_scc1 {base}_poll
    ''')
    for q in range(2):
        for tp in range(2):
            a(f'buffer_load_dwordx4 {vr(32 + 8*q + 4*tp, 4)}, v{vO}, s[{SH}:{SH+3}], {"0" if q == 0 else f"s{sT1}"} offen offset:{64*tp} sc1')
    a(f's_branch {base}_sum')
    a.label(f'{base}_nowait')
    for i in range(16):
        a(f'v_mov_b32 v{32 + i}, 0')
    a.label(f'{base}_sum')
    for q in range(2):
        for tp in range(2):
            i0 = q * 4 + tp * 2
            a(f's_waitcnt lgkmcnt({6 - i0})')
            for h in range(0, 8, 2):
                a(f'v_pk_add_f32 {vr(4*i0 + h, 2)}, {vr(4*i0 + h, 2)}, {vr(64 + 4*i0 + h, 2)}')
            for r in range(4):
                a(f'v_permlane16_swap_b32 v{4*i0 + r}, v{4*i0 + 4 + r}')
    a(f's_cmp_eq_u32 s{sT0}, 1')
    a(f's_cbranch_scc0 {base}_noround')
    for c in range(16):
        a(f'v_cvt_pk_bf16_f32 v{96 + c}, v{2*c}, v{2*c + 1}')
    for c in range(16):
        a(f'v_lshlrev_b32 v{2*c}, 16, v{96 + c}')
        a(f'v_and_b32 v{2*c + 1}, 0xffff0000, v{96 + c}')
    a.label(f'{base}_noround')
    a('s_waitcnt vmcnt(0)')
    for q in range(2):
        for tp in range(2):
            i0 = q * 4 + tp * 2
            P = 96 + 4 * (q * 2 + tp)
            for R in (32 + 8 * q + 4 * tp, vRes + 8 * q + 4 * tp):
                for c in range(4):
                    a(f'v_lshlrev_b32 v{112 + 2*c}, 16, v{R + c}')
                    a(f'v_and_b32 v{113 + 2*c}, 0xffff0000, v{R + c}')
                for c in range(4):
                    a(f'v_pk_add_f32 {vr(4*i0 + 2*c, 2)}, {vr(112 + 2*c, 2)}, {vr(4*i0 + 2*c, 2)}')
            for c in range(4):
                a(f'v_cvt_pk_bf16_f32 v{P + c}, v{4*i0 + 2*c}, v{4*i0 + 2*c + 1}')
            a(f'buffer_store_dwordx4 {vr(P, 4)}, v{vO}, s[{SO}:{SO+3}], {"0" if q == 0 else f"s{sT1}"} offen offset:{64*tp}{st_flags}')
    a(f'''
    s_cmp_gt_u32 s{sMode}, s{sRole}
    s_cbranch_scc0 {base}_done
    s_lshl_b32 s{sT2}, s{sW}, 2
    s_add_u32 s{sT2}, s{sT2}, 64
    v_lshlrev_b32 v{vTk+1}, 8, v{vL}
    v_add_u32 v{vTk+1}, s{sT2}, v{vTk+1}
    v_mov_b32 v{vTk}, 1
    s_waitcnt vmcnt(0)
    buffer_store_dword v{vTk}, v{vTk+1}, s[{SF}:{SF+3}], 0 offen sc1
    ''')
    a.label(f'{base}_done')
    if stamp:
        stamp_out(a, sW, 36)
    if part:
        return None
    a.label(f'{base}_end')
    a('s_endpgm')
    return (''.join(descriptor(n, 168, 72, 168) for n in names), [(n, 256, 512, G2F_LDS) for n in names])
```

```python
from gen_common import *
from gen_p import sincos, wave_reduce, radix8_const, ln_stats, ln_finish, EPS, WB

WS_WT = 20 << 20
PF_WGS = 256
SC1 = ' sc1'
PF2, PF3 = 2 << 20, 3 << 20
PF1 = 0


def fma_sincos(a, dc, ds, fv, fk, base, tmp):
    a(f'v_fma_f32 v{tmp}, v{fv}, v{fk}, v{base}')
    a(f'v_cos_f32 v{dc}, v{tmp}')
    a(f'v_sin_f32 v{ds}, v{tmp}')


def entries2(a, names, stamp):
    base = names[0][:-8]
    for li, name in enumerate(names):
        kernel_start(a, name)
        if stamp:
            a('s_memtime s[50:51]\ns_memrealtime s[52:53]')
        a(f's_load_dwordx2 s[36:37], s[0:1], {KA_WS}')
        a(f's_load_dwordx2 s[32:33], s[0:1], {KA_X}')
        a(f's_mov_b32 s38, {li}')
        a('s_mov_b32 s94, 0')
        a(f's_branch {base}_body')
    a.label(f'{base}_fused')
    a(f's_load_dwordx2 s[36:37], s[0:1], {KA_WS}')
    a(f's_load_dwordx2 s[32:33], s[0:1], {KA_X}')
    a('s_mov_b32 s38, 1')
    a.label(f'{base}_body')
    return base


def stream_loads(a, items, vaddr, r0, wgs, per_inst):
    r = r0
    for (lo, st, n) in items:
        srd(a, 4, lo, lo + 1, st, n)
        chunk = wgs * per_inst
        for c in range(-(-n // chunk)):
            a(f's_mov_b32 s21, {c * chunk}')
            a(f'buffer_load_dwordx4 {vr(r, 4)}, v{vaddr}, s[4:7], s21 offen')
            r += 4


def prefetch_role(a, label, endlabel, items):
    a.label(label)
    a(f's_cmp_ge_u32 s2, {256 + PF_WGS}')
    a(f's_cbranch_scc1 {endlabel}')
    for i, (ka, st, n) in enumerate(items):
        a(f's_load_dwordx2 s[{40 + 2*i}:{41 + 2*i}], s[0:1], {ka}')
    a('s_sub_u32 s20, s2, 256')
    a('s_lshl_b32 s20, s20, 13')
    a('v_lshlrev_b32 v1, 4, v0')
    a('v_add_u32 v1, s20, v1')
    a('s_waitcnt lgkmcnt(0)')
    stream_loads(a, [(40 + 2 * i, st, n) for i, (ka, st, n) in enumerate(items)], 1, 4, PF_WGS, 8192)
    a(f's_branch {endlabel}')


def zoff(a, dst, vL, sW, t0, t1, sT0, sT1):
    a(f'''
    v_bfe_u32 v{t0}, v{vL}, 2, 2
    v_lshrrev_b32 v{t1}, 4, v{vL}
    v_lshlrev_b32 v{t0}, 17, v{t0}
    v_lshl_add_u32 v{t0}, v{t1}, 15, v{t0}
    v_and_b32 v{t1}, 3, v{vL}
    v_lshl_add_u32 v{dst}, v{t1}, 4, v{t0}
    s_and_b32 s{sT0}, s2, 7
    s_lshl_b32 s{sT0}, s{sT0}, 5
    s_lshr_b32 s{sT1}, s2, 3
    s_add_u32 s{sT0}, s{sT0}, s{sT1}
    s_lshl_b32 s{sT0}, s{sT0}, 6
    s_lshl_b32 s{sT1}, s{sW}, 19
    s_add_u32 s{sT0}, s{sT0}, s{sT1}
    v_add_u32 v{dst}, s{sT0}, v{dst}
    ''')


def twiddle(a, DR, DI, TW, P, conj, T1, T2, hook=None):
    for r0 in range(0, 16, 4):
        if hook:
            hook(r0)
        for r in range(r0, r0 + 4):
            a(f'v_mul_f32 v{T1 + (r & 3)}, v{DR + r}, v{TW + 2*r}')
            a(f'v_mul_f32 v{T2 + (r & 3)}, v{DI + r}, v{TW + 2*r}')
        n1, n2 = ('-', '') if conj else ('', '-')
        for r in range(r0, r0 + 4):
            a(f'v_fma_f32 v{T1 + (r & 3)}, {n1}v{DI + r}, v{TW + 2*r + 1}, v{T1 + (r & 3)}')
            a(f'v_fma_f32 v{T2 + (r & 3)}, {n2}v{DR + r}, v{TW + 2*r + 1}, v{T2 + (r & 3)}')
        for r in range(r0, r0 + 4):
            a(f'v_cvt_pk_bf16_f32 v{P + r}, v{T1 + (r & 3)}, v{T2 + (r & 3)}')


P1_S, P1_E, P1_ES = 16384, 32768, 4096 + 128
P1_LDS = P1_E + 4 * P1_ES


def gen_p1(a, names=('p1a_kernel', 'p1b_kernel'), stamp=False):
    SX, SZ, SP, S2 = 4, 8, 12, 16
    sW, sT0, sT1, sRow = 20, 21, 22, 23
    vL = 0
    RAW, PA, PB = 8, 16, 24
    CT = 32
    C1, NS1, C2, TW = CT, CT + 8, CT, CT + 16
    R8, ST = 80, 82
    XF = 86
    vZ, vLW, vLR, vEW, vER, vTB = 118, 119, 120, 121, 122, 123
    K = XF + 16
    base = entries2(a, names, stamp)
    a(f'''
    s_cmp_ge_u32 s2, 256
    s_cbranch_scc1 {base}_pf
    v_lshrrev_b32 v1, 6, v0
    v_and_b32 v{vL}, 63, v0
    v_readfirstlane_b32 s{sW}, v1
    v_lshlrev_b32 v{vTB}, 4, v{vL}
    ; k1 = 16(w>>2) + 2(w&3), k2 = 2(w&1) + 8(w>>1)
    v_lshrrev_b32 v2, 2, v1
    v_and_b32 v3, 3, v1
    v_lshlrev_b32 v3, 1, v3
    v_lshl_add_u32 v2, v2, 4, v3
    v_lshrrev_b32 v4, 5, v{vL}
    v_lshl_add_u32 v2, v4, 3, v2
    v_cvt_f32_u32 v2, v2
    v_lshrrev_b32 v3, 1, v1
    v_and_b32 v5, 1, v1
    v_lshlrev_b32 v5, 1, v5
    v_lshl_add_u32 v3, v3, 3, v5
    v_lshl_add_u32 v3, v4, 2, v3
    v_cvt_f32_u32 v3, v3
    v_and_b32 v4, 31, v{vL}
    v_cvt_f32_u32 v4, v4
    v_mul_f32 v5, {f32hex(1/32.0)}, v4
    v_mul_f32 v6, v5, v2
    v_add_f32 v7, v6, v5
    v_cos_f32 v{XF}, v6
    v_cos_f32 v{XF+1}, v7
    v_sin_f32 v{XF+2}, v6
    v_sin_f32 v{XF+3}, v7
    v_mul_f32 v5, {f32hex(1/1024.0)}, v4
    v_mul_f32 v6, v5, v3
    v_add_f32 v7, v6, v5
    v_cos_f32 v{K+4}, v6
    v_sin_f32 v{K+5}, v6
    v_cos_f32 v{K+6}, v7
    v_sin_f32 v{K+7}, v7
    v_cvt_pk_bf16_f32 v{K}, v{XF}, v{XF+1}
    v_cvt_pk_bf16_f32 v{K+1}, -v{XF+2}, -v{XF+3}
    v_bfe_u32 v4, v{vL}, 1, 4
    v_cvt_f32_u32 v4, v4
    v_mul_f32 v5, {f32hex(1/32.0)}, v4
    v_and_b32 v6, 1, v{vL}
    v_cvt_f32_u32 v6, v6
    v_mul_f32 v6, 0.25, v6
    v_fma_f32 v6, v5, v3, v6
    v_add_f32 v7, v6, v5
    v_cos_f32 v{XF}, v6
    v_sin_f32 v{XF+1}, v6
    v_cos_f32 v{XF+2}, v7
    v_sin_f32 v{XF+3}, v7
    s_lshl_b32 s{sRow}, s{sW}, 8
    s_add_u32 s{sRow}, s{sRow}, s2
    s_lshl_b32 s{sRow}, s{sRow}, 11
    v_cvt_pk_bf16_f32 v{K+2}, v{XF}, v{XF+1}
    v_cvt_pk_bf16_f32 v{K+3}, v{XF+2}, v{XF+3}
    s_waitcnt lgkmcnt(0)
    s_add_u32 s40, s36, {hex(WS_P)}
    s_addc_u32 s41, s37, 0
    s_cmp_eq_u32 s38, 0
    s_cselect_b32 s40, s32, s40
    s_cselect_b32 s41, s33, s41
    ''')
    srd(a, SX, 40, 41, 0, 4 << 20)
    a(f'''
    buffer_load_dwordx4 {vr(RAW,4)}, v{vTB}, s[{SX}:{SX+3}], s{sRow} offen
    buffer_load_dwordx4 {vr(RAW+4,4)}, v{vTB}, s[{SX}:{SX+3}], s{sRow} offen offset:1024
    s_cmp_eq_u32 s38, 0
    s_cbranch_scc1 {base}_nopart
    ''')
    srd(a, SP, 36, 37, WS_P1, 4 << 20)
    PR = [PA, PB, XF + 24][:NSPLIT - 1]
    for k, pr in enumerate(PR):
        a(f's_add_u32 s44, s{sRow}, {k << 22}')
        a(f'buffer_load_dwordx4 {vr(pr,4)}, v{vTB}, s[{SP}:{SP+3}], s44 offen')
        a(f'buffer_load_dwordx4 {vr(pr+4,4)}, v{vTB}, s[{SP}:{SP+3}], s44 offen offset:1024')
    srd(a, S2, 36, 37, WS_X2, 4 << 20)
    a.label(f'{base}_nopart')
    a(f'''
    s_lshr_b32 s{sT0}, s{sW}, 2
    s_lshl_b32 s{sT0}, s{sT0}, 10
    s_and_b32 s{sT1}, s{sW}, 3
    s_lshl_b32 s{sT1}, s{sT1}, 2
    s_add_u32 s{sT0}, s{sT0}, s{sT1}
    v_add_u32 v1, s{sT0}, v{vTB}
    ds_write_b32 v1, v{K}
    ds_write_b32 v1, v{K+1} offset:2048
    s_lshr_b32 s{sT0}, s{sW}, 1
    s_lshl_b32 s{sT0}, s{sT0}, 10
    s_and_b32 s{sT1}, s{sW}, 1
    s_lshl_b32 s{sT1}, s{sT1}, 3
    s_add_u32 s{sT0}, s{sT0}, s{sT1}
    v_add_u32 v1, s{sT0}, v{vTB}
    ds_write_b64 v1, {vr(K+2,2)} offset:4096
    s_lshl_b32 s{sT0}, s{sW}, 10
    v_add_u32 v1, s{sT0}, v{vTB}
    ds_write_b128 v1, {vr(K+4,4)} offset:8192
    ''')
    srd(a, SZ, 36, 37, WS_Z, 4 << 20)
    a(f'''
    s_lshl_b32 s{sT0}, s{sW}, 11
    s_add_u32 s{sT0}, s{sT0}, {P1_S}
    v_add_u32 v{vLW}, s{sT0}, v{vTB}
    v_lshrrev_b32 v3, 5, v{vL}
    v_bfe_u32 v4, v{vL}, 2, 2
    v_lshl_add_u32 v3, v3, 3, v4
    v_lshlrev_b32 v3, 6, v3
    v_bfe_u32 v4, v{vL}, 4, 1
    v_lshl_add_u32 v3, v4, 5, v3
    v_and_b32 v4, 3, v{vL}
    v_lshl_add_u32 v3, v4, 3, v3
    v_add_u32 v{vLR}, s{sT0}, v3
    s_waitcnt lgkmcnt(0)
    s_barrier
    ''')
    for g in range(4):
        a(f'ds_read_b128 {vr(CT + 4*g, 4)}, v{vTB} offset:{g * 1024}')
    for g in range(8):
        a(f'ds_read_b128 {vr(TW + 4*g, 4)}, v{vTB} offset:{(8 + g) * 1024}')
    a(f'''
    s_lshr_b32 s{sT0}, s{sW}, 1
    s_mul_i32 s{sT0}, s{sT0}, {P1_ES}
    s_and_b32 s{sT1}, s{sW}, 1
    s_lshl_b32 s{sT1}, s{sT1}, 2
    s_add_u32 s{sT0}, s{sT0}, s{sT1}
    s_add_u32 s{sT0}, s{sT0}, {P1_E}
    v_and_b32 v3, 31, v{vL}
    v_lshrrev_b32 v4, 5, v{vL}
    v_lshl_add_u32 v3, v4, 6, v3
    v_lshlrev_b32 v3, 3, v3
    v_add_u32 v{vEW}, s{sT0}, v3
    v_lshrrev_b32 v3, 4, v{vL}
    v_mul_u32_u24 v3, {P1_ES}, v3
    v_and_b32 v4, 15, v{vL}
    v_lshl_add_u32 v3, v4, 5, v3
    s_lshl_b32 s{sT0}, s{sW}, 9
    s_add_u32 s{sT0}, s{sT0}, {P1_E}
    v_add_u32 v{vER}, s{sT0}, v3
    ''')
    zoff(a, vZ, vL, sW, 3, 4, sT0, sT1)
    radix8_const(a, R8, vL, 1, -1)
    if stamp:
        a('s_memtime s[54:55]')
    a(f'''
    s_waitcnt vmcnt(0)
    s_cmp_eq_u32 s38, 0
    s_cbranch_scc1 {base}_ln
    ''')
    for c in range(8):
        d = XF + 8 * (c & 1)
        for k, sreg in enumerate([RAW + c] + [pr + c for pr in PR]):
            a(f'v_lshlrev_b32 v{d + 2*k}, 16, v{sreg}')
            a(f'v_and_b32 v{d + 2*k + 1}, 0xffff0000, v{sreg}')
        if NSPLIT == 4:
            a(f'v_pk_add_f32 {vr(d + 2, 2)}, {vr(d + 2, 2)}, {vr(d + 4, 2)}')
            a(f'v_pk_add_f32 {vr(d + 2, 2)}, {vr(d + 2, 2)}, {vr(d + 6, 2)}')
        a(f'v_pk_add_f32 {vr(d, 2)}, {vr(d, 2)}, {vr(d + 2, 2)}')
        a(f'v_cvt_pk_bf16_f32 v{RAW + c}, v{d}, v{d + 1}')
    a(f'''
    s_cmp_eq_u32 s94, 0
    s_cbranch_scc1 {base}_x2mem
    v_add_u32 v1, {LDS_STASH - P1_S}, v{vLW}
    ds_write_b128 v1, {vr(RAW, 4)}
    ds_write_b128 v1, {vr(RAW + 4, 4)} offset:1024
    s_branch {base}_ln
    ''')
    a.label(f'{base}_x2mem')
    a(f'buffer_store_dwordx4 {vr(RAW, 4)}, v{vTB}, s[{S2}:{S2+3}], s{sRow} offen{SC1}')
    a(f'buffer_store_dwordx4 {vr(RAW + 4, 4)}, v{vTB}, s[{S2}:{S2+3}], s{sRow} offen offset:1024{SC1}')
    a.label(f'{base}_ln')
    for c in range(8):
        a(f'v_lshlrev_b32 v{XF + 2*c}, 16, v{RAW + c}')
        a(f'v_and_b32 v{XF + 2*c + 1}, 0xffff0000, v{RAW + c}')
    ln_stats(a, XF, ST, None)
    wave_reduce(a, [ST, ST + 1, ST + 2], [24, 25, 26])
    ln_finish(a, 24, 25, 26, ST)
    for c in range(8):
        a(f'v_pk_fma_f32 {vr(XF + 2*c, 2)}, {vr(XF + 2*c, 2)}, {vr(ST,2)}, {vr(ST+2,2)} op_sel_hi:[1,0,0]')
    for c in range(8):
        a(f'v_cvt_pk_bf16_f32 v{PA + c}, v{XF + 2*c}, v{XF + 2*c + 1}')
    a(f'''
    ds_write_b128 v{vLW}, {vr(PA, 4)}
    ds_write_b128 v{vLW}, {vr(PA + 4, 4)} offset:1024
    v_mov_b32 v{ST+1}, s24
    v_subrev_f32 v{ST+1}, s25, v{ST+1}
    v_mul_f32 v{ST+1}, v{ST+1}, v{ST}
    s_waitcnt lgkmcnt(0)
    ''')
    for q in range(2):
        for jj in range(2):
            a(f'ds_read_b64_tr_b16 {vr(PB + 4*q + 2*jj, 2)}, v{vLR} offset:{(16*q + 4*jj) * 64}')
    DR, DI = XF, XF + 16
    for q in range(2):
        a(f's_waitcnt lgkmcnt({2 - 2*q})')
        for (d, c) in ((DR, C1), (DI, NS1)):
            cc = '0' if q == 0 else vr(d, 16)
            a(f'v_mfma_f32_32x32x16_bf16 {vr(d,16)}, {vr(PB + 4*q, 4)}, {vr(c + 4*q, 4)}, {cc}')
    P = 8
    for g in range(4):
        a(f'ds_read_b128 {vr(C2 + 4*g, 4)}, v{vTB} offset:{(4 + g) * 1024}')
    twiddle(a, DR, DI, TW, P, False, 1, PB)
    a('s_waitcnt lgkmcnt(0)')
    D2 = XF
    for q in range(4):
        cc = '0' if q == 0 else vr(D2, 16)
        a(f'v_mfma_f32_32x32x16_bf16 {vr(D2, 16)}, {vr(C2 + 4*q, 4)}, {vr(P + 4*q, 4)}, {cc}')
    a('s_nop 7')
    a('s_mov_b64 exec, 1')
    a(f'v_mov_b32 v{D2}, v{ST + 1}')
    a('s_mov_b64 exec, -1')
    for p in range(8):
        a(f'v_cvt_pk_bf16_f32 v{PB + p}, v{D2 + 2*p}, v{D2 + 2*p + 1}')
        kb = (p & 1) + 4 * (p >> 1)
        a(f'ds_write_b32 v{vEW}, v{PB + p} offset:{kb * 32 * 8}')
    a(f'''
    s_waitcnt lgkmcnt(0)
    s_barrier
    ds_read_b128 {vr(PA, 4)}, v{vER}
    ds_read_b128 {vr(PA + 4, 4)}, v{vER} offset:16
    s_mov_b32 s{sT1}, 16384
    ''')
    for m in range(4):
        if m % 2 == 0:
            a(f's_waitcnt lgkmcnt({1 - m // 2})')
        a(f'v_mfma_f32_16x16x16_bf16 {vr(XF + 16 + 4*m, 4)}, {vr(R8, 2)}, {vr(PA + 2*m, 2)}, 0')
    if stamp:
        a('s_memtime s[56:57]')
    for m in range(4):
        a(f'v_cvt_pk_bf16_f32 v{PB + m}, v{XF + 16 + 4*m}, v{XF + 16 + 4*m + 1}')
        a(f'v_cvt_pk_bf16_f32 v{PB + 4 + m}, v{XF + 16 + 4*m + 2}, v{XF + 16 + 4*m + 3}')
    a(f'buffer_store_dwordx4 {vr(PB, 4)}, v{vZ}, s[{SZ}:{SZ+3}], 0 offen{SC1}')
    a(f'buffer_store_dwordx4 {vr(PB + 4, 4)}, v{vZ}, s[{SZ}:{SZ+3}], s{sT1} offen{SC1}')
    a('s_cmp_eq_u32 s94, 0')
    a(f's_cbranch_scc1 {base}_fin')
    arrive(a, 0, 2, 'p2_fused')
    a.label(f'{base}_fin')
    if stamp:
        stamp_out(a, sW, 36)
    a.label(f'{base}_end')
    a('s_endpgm')
    a.label(f'{base}_pf')
    a(f'''
    s_cmp_ge_u32 s2, {256 + PF_WGS}
    s_cbranch_scc1 {base}_end
    s_cmp_eq_u32 s38, 0
    s_cbranch_scc0 {base}_end
    s_load_dwordx4 s[40:43], s[0:1], {KA_WR}
    v_lshrrev_b32 v1, 6, v0
    v_and_b32 v{vL}, 63, v0
    v_readfirstlane_b32 s{sW}, v1
    s_sub_u32 s24, s2, 256
    s_cmp_ge_u32 s{sW}, 2
    s_cbranch_scc1 {base}_pf2
    s_and_b32 s25, s24, 7
    s_bfe_u32 s26, s24, 0x30003
    s_lshr_b32 s27, s24, 6
    s_lshl_b32 s28, s27, 4
    s_lshl_b32 s29, s{sW}, 3
    s_add_u32 s28, s28, s29
    v_lshrrev_b32 v2, 3, v{vL}
    v_add_u32 v4, s28, v2
    s_lshl_b32 s28, s27, 6
    s_add_u32 s28, s28, s29
    v_add_u32 v2, s28, v2
    v_lshl_add_u32 v2, v2, 3, s25
    v_mul_u32_u24 v2, 1026, v2
    v_and_b32 v3, 7, v{vL}
    s_lshl_b32 s28, s26, 7
    v_add_u32 v5, s28, v2
    v_lshl_add_u32 v5, v3, 4, v5
    v_lshrrev_b32 v6, 1, v3
    v_lshlrev_b32 v6, 17, v6
    v_and_b32 v7, 1, v3
    v_lshl_add_u32 v6, v7, 13, v6
    v_lshl_add_u32 v6, v4, 4, v6
    s_lshl_b32 s28, s26, 5
    s_add_u32 s28, s28, s25
    s_lshl_b32 s28, s28, 14
    v_add_u32 v6, s28, v6
    s_waitcnt lgkmcnt(0)
    ''')
    srd(a, 4, 40, 41, 0, 2048 * 513 * 2)
    srd(a, 8, 42, 43, 0, 2048 * 513 * 2)
    for r in range(4):
        a(f's_mov_b32 s{sT0}, {r * 128 * 1026}')
        a(f'buffer_load_dwordx4 {vr(8 + 4*r, 4)}, v5, s[4:7], s{sT0} offen')
        a(f'buffer_load_dwordx4 {vr(24 + 4*r, 4)}, v5, s[8:11], s{sT0} offen')
    srd(a, 12, 36, 37, WS_WT, 4 << 20)
    a(f'''
    s_cmp_eq_u32 s26, 0
    s_cbranch_scc0 {base}_nonyq
    ''')
    for r in range(4):
        a(f's_mov_b32 s{sT0}, {r * 128 * 1026}')
        a(f'buffer_load_ushort v{40 + r}, v2, s[4:7], s{sT0} offen offset:1024')
        a(f'buffer_load_ushort v{44 + r}, v2, s[8:11], s{sT0} offen offset:1024')
    a(f'''
    s_mov_b32 s{sT0}, 0xffff0000
    v_cmp_eq_u32 vcc, 0, v3
    s_waitcnt vmcnt(0)
    ''')
    for r in range(4):
        for (d, n) in ((8 + 4 * r, 40 + r), (24 + 4 * r, 44 + r)):
            a(f'v_and_or_b32 v{n}, v{d}, s{sT0}, v{n}')
            a(f'v_cndmask_b32 v{d}, v{d}, v{n}, vcc')
    a.label(f'{base}_nonyq')
    a(f'''
    s_mov_b32 s27, 0x05040100
    s_mov_b32 s28, 0x07060302
    v_add_u32 v7, 4096, v6
    s_waitcnt vmcnt(0)
    ''')
    for i in range(8):
        for r in range(4):
            a(f'v_perm_b32 v{48 + 4*i + r}, v{24 + 4*r + (i >> 1)}, v{8 + 4*r + (i >> 1)}, s{27 + (i & 1)}')
        a(f'buffer_store_dwordx4 {vr(48 + 4*i, 4)}, v{6 + (i >> 2)}, s[12:15], 0 offen offset:{(i & 3) * 1024}{SC1}')
    a('s_endpgm')
    a.label(f'{base}_pf2')
    if PF1:
        a(f'''
        s_cmp_lt_u32 s{sW}, 4
        s_cbranch_scc1 {base}_end
        s_load_dwordx4 s[44:47], s[0:1], {KA_WG}
        s_lshl_b32 s24, s24, 12
        s_sub_u32 s{sT0}, s{sW}, 4
        s_lshl_b32 s{sT0}, s{sT0}, 10
        s_add_u32 s24, s24, s{sT0}
        v_lshlrev_b32 v1, 4, v{vL}
        v_add_u32 v1, s24, v1
        s_waitcnt lgkmcnt(0)
        ''')
        stream_loads(a, [(44, 0, PF1), (46, 0, PF1)], 1, 4, PF_WGS, 4096)
    a('s_endpgm')
    return (''.join(descriptor(n, 124, NSG, 124) for n in names), [(n, 256 + PF_WGS * (n == names[0]), 512, P1_LDS) for n in names])


def gen_p2(a, names=('p2a_kernel', 'p2b_kernel'), stamp=False):
    SZ, SW = 4, 8
    sW, sT0, sT1 = 20, 21, 22
    vL = 0
    RAW, WT = 8, 16
    FR, FI, IR, II = 24, 28, 32, 36
    TC, TS = 40, 44
    OP, DR, DI = 48, 56, 64
    T1, T2, WF = 72, 76, 80
    vG, vR, vLin, vW, vE = 88, 89, 90, 91, 92
    name = names[0][:-8]
    for li, nm in enumerate(names):
        kernel_start(a, nm)
        if stamp:
            a('s_memtime s[50:51]\ns_memrealtime s[52:53]')
        a('s_mov_b32 s94, 0')
        if li == 0:
            a(f's_branch {name}_fused')
    a.label(f'{name}_fused')
    a(f's_load_dwordx2 s[36:37], s[0:1], {KA_WS}')
    a(f'''
    s_cmp_ge_u32 s2, 256
    s_cbranch_scc1 {name}_pf
    v_lshrrev_b32 v1, 6, v0
    v_and_b32 v{vL}, 63, v0
    v_readfirstlane_b32 s{sW}, v1
    v_lshrrev_b32 v2, 3, v{vL}
    v_lshlrev_b32 v2, 5, v2
    v_bfe_u32 v3, v{vL}, 2, 1
    v_add_u32 v2, v2, v3
    v_lshl_add_u32 v2, v1, 2, v2
    v_lshlrev_b32 v2, 6, v2
    v_lshrrev_b32 v3, 4, v{vL}
    v_and_b32 v4, 3, v{vL}
    v_xor_b32 v4, v4, v3
    v_lshl_add_u32 v{vG}, v4, 4, v2
    v_lshlrev_b32 v{vLin}, 4, v0
    v_and_b32 v2, 7, v{vL}
    v_bfe_u32 v4, v{vL}, 3, 1
    v_lshl_add_u32 v2, v2, 1, v4
    v_lshrrev_b32 v4, 2, v2
    v_lshrrev_b32 v5, 1, v1
    v_xor_b32 v4, v4, v5
    v_lshlrev_b32 v4, 4, v4
    v_lshl_add_u32 v4, v2, 6, v4
    v_lshl_add_u32 v4, v3, 12, v4
    v_and_b32 v5, 1, v1
    v_lshl_add_u32 v{vR}, v5, 3, v4
    s_lshl_b32 s{sT1}, s{sW}, 11
    s_mov_b32 m0, s{sT1}
    s_lshl_b32 s{sT0}, s2, 14
    s_add_u32 s24, s{sT0}, {hex(WS_WT)}
    ; constants
    v_and_b32 v1, 15, v{vL}
    v_cvt_f32_u32 v1, v1
    v_cvt_f32_u32 v2, v3
    v_mul_f32 v3, v1, v2
    v_mul_f32 v4, 0.25, v3
    ''')
    for u in range(2):
        sincos(a, 6, 7, 1, u / 16.0, 4, 5)
        a(f'v_cvt_pk_bf16_f32 v{FR + u}, v6, v7')
        a(f'v_cvt_pk_bf16_f32 v{FI + u}, -v7, v6')
        a(f'v_cvt_pk_bf16_f32 v{IR + u}, v6, -v7')
        a(f'v_cvt_pk_bf16_f32 v{II + u}, v7, v6')
    a('s_waitcnt lgkmcnt(0)')
    srd(a, SW, 36, 37, 's24', 16384)
    a(f'''
    v_lshlrev_b32 v8, 4, v{vL}
    v_add_u32 v{vLin}, s{sT1}, v8
    buffer_load_dwordx4 {vr(WT + 4, 4)}, v{vLin}, s[{SW}:{SW+3}], 0 offen offset:1024
    buffer_load_dwordx4 {vr(WT, 4)}, v{vLin}, s[{SW}:{SW+3}], 0 offen
    ''')
    wait_all(a, 0, f'{name}_w', sW, SZ, 8)
    srd(a, SZ, 36, 37, f's{sT0}', 16384)
    a(f'''
    buffer_load_dwordx4 v{vG}, s[{SZ}:{SZ+3}], 0 offen lds
    s_add_u32 m0, s{sT1}, {1024 - 128}
    s_add_u32 s{sT0}, s{sT0}, {hex(WS_Z2)}
    buffer_load_dwordx4 v{vG}, s[{SZ}:{SZ+3}], 0 offen offset:128 lds
    ''')
    srd(a, 12, 36, 37, f's{sT0}', 16384)
    for u in range(2, 4):
        sincos(a, 6, 7, 1, u / 16.0, 4, 5)
        a(f'v_cvt_pk_bf16_f32 v{FR + u}, v6, v7')
        a(f'v_cvt_pk_bf16_f32 v{FI + u}, -v7, v6')
        a(f'v_cvt_pk_bf16_f32 v{IR + u}, v6, -v7')
        a(f'v_cvt_pk_bf16_f32 v{II + u}, v7, v6')
    a(f'v_mul_f32 v4, {f32hex(4 / 256.0)}, v3')
    for r in range(4):
        sincos(a, TC + r, TS + r, 1, r / 256.0, 4, 5)
    if stamp:
        a('s_memtime s[54:55]')
    a('s_waitcnt vmcnt(0)')
    a('s_barrier')
    for u in range(4):
        a(f'ds_read_b64 {vr(RAW + 2*u, 2)}, v{vR} offset:{u * 1024}')
    a('s_waitcnt lgkmcnt(0)')
    for j in range(2):
        for u in range(4):
            a(f'v_mov_b32 v{OP + 4*j + u}, v{RAW + 2*u + j}')

    def stage(atype, cr, ci):
        for j in range(2):
            for (d, c) in ((DR, cr), (DI, ci)):
                if atype:
                    a(f'v_mfma_f32_16x16x32_bf16 {vr(d + 4*j, 4)}, {vr(OP + 4*j, 4)}, {vr(c, 4)}, 0')
                else:
                    a(f'v_mfma_f32_16x16x32_bf16 {vr(d + 4*j, 4)}, {vr(c, 4)}, {vr(OP + 4*j, 4)}, 0')

    def cmul(j, cs, ss, conj):
        for r in range(4):
            a(f'v_mul_f32 v{T1 + r}, v{DR + 4*j + r}, v{cs + r}')
            a(f'v_mul_f32 v{T2 + r}, v{DI + 4*j + r}, v{cs + r}')
        n1, n2 = ('-', '') if conj else ('', '-')
        for r in range(4):
            a(f'v_fma_f32 v{T1 + r}, {n1}v{DI + 4*j + r}, v{ss + r}, v{T1 + r}')
            a(f'v_fma_f32 v{T2 + r}, {n2}v{DR + 4*j + r}, v{ss + r}, v{T2 + r}')
        for r in range(4):
            a(f'v_cvt_pk_bf16_f32 v{OP + 4*j + r}, v{T1 + r}, v{T2 + r}')

    stage(True, FR, FI)
    for j in range(2):
        cmul(j, TC, TS, False)
    stage(False, FR, FI)
    a('s_waitcnt vmcnt(0)')
    for j in range(2):
        for r in range(4):
            a(f'v_lshlrev_b32 v{WF + r}, 16, v{WT + 4*j + r}')
            a(f'v_and_b32 v{WF + 4 + r}, 0xffff0000, v{WT + 4*j + r}')
        cmul(j, WF, WF + 4, True)
    stage(True, IR, II)
    for j in range(2):
        cmul(j, TC, TS, True)
    stage(False, IR, II)
    if stamp:
        a('s_memtime s[56:57]')
    for r in range(4):
        for j in range(2):
            a(f'v_cvt_pk_bf16_f32 v{RAW + 2*r + j}, v{DR + 4*j + r}, v{DI + 4*j + r}')
        a(f'ds_write_b64 v{vR}, {vr(RAW + 2*r, 2)} offset:{r * 1024}')
    a(f'''
    s_waitcnt lgkmcnt(0)
    s_barrier
    ds_read_b128 {vr(OP, 4)}, v{vLin}
    ds_read_b128 {vr(OP + 4, 4)}, v{vLin} offset:1024
    s_waitcnt lgkmcnt(1)
    buffer_store_dwordx4 {vr(OP, 4)}, v{vG}, s[12:15], 0 offen{SC1}
    s_waitcnt lgkmcnt(0)
    buffer_store_dwordx4 {vr(OP + 4, 4)}, v{vG}, s[12:15], 0 offen offset:128{SC1}
    s_cmp_eq_u32 s94, 0
    s_cbranch_scc1 {name}_fin
    ''')
    arrive(a, 1, 2, 'p3_fused')
    a.label(f'{name}_fin')
    if stamp:
        stamp_out(a, sW, 36)
    a.label(f'{name}_end')
    a('s_endpgm')
    prefetch_role(a, f'{name}_pf', f'{name}_end', [(KA_WG, PF1, PF2), (KA_WU, PF1, PF2)])
    return ''.join(descriptor(n, 96, NSG, 96) for n in names), [(names[0], 256 + PF_WGS, 512, 16384), (names[1], 256, 512, 16384)]


P3_E, P3_RS = 16384, 2048 + 64
P3_LDS = P3_E + 8 * P3_RS


def gen_p3(a, names=('p3a_kernel', 'p3b_kernel'), stamp=False, pf_wd=True):
    SX, SZ, S1, SL = 4, 8, 12, 16
    sW, sT0, sT1, sRow = 20, 21, 22, 23
    vL = 0
    ZR, BOP, XR = 8, 16, 24
    CT = 32
    CR, CI, C2, TW = CT, CT + 8, CT, CT + 16
    R8, ST = 80, 82
    DR, DI, Y = 86, 102, TW
    K = DI
    vZ, vX, vXS, vEW, vER, vLN, vTB = 118, 119, 120, 121, 122, 123, 124
    base = entries2(a, names, stamp)
    a(f'''
    s_cmp_ge_u32 s2, 256
    s_cbranch_scc1 {base}_pf
    v_lshrrev_b32 v1, 6, v0
    v_and_b32 v{vL}, 63, v0
    v_readfirstlane_b32 s{sW}, v1
    v_lshlrev_b32 v{vTB}, 4, v{vL}
    ''')
    zoff(a, vZ, vL, sW, 3, 4, sT0, sT1)
    a(f'''
    ; kb = 8(w>>2) + (w&3) + 4h ; k2 = 2(w&1) + 8(w>>1) + 4h
    v_lshrrev_b32 v2, 2, v1
    v_and_b32 v3, 3, v1
    v_lshl_add_u32 v2, v2, 3, v3
    v_lshrrev_b32 v4, 5, v{vL}
    v_lshl_add_u32 v2, v4, 2, v2
    v_cvt_f32_u32 v2, v2
    v_lshrrev_b32 v3, 1, v1
    v_and_b32 v5, 1, v1
    v_lshlrev_b32 v5, 1, v5
    v_lshl_add_u32 v3, v3, 3, v5
    v_lshl_add_u32 v3, v4, 2, v3
    v_cvt_f32_u32 v3, v3
    ; n1 = 16*((i>>2)&1) + (i&3) + 4*((i>>3)&3)
    v_bfe_u32 v5, v{vL}, 2, 1
    v_and_b32 v6, 3, v{vL}
    v_lshl_add_u32 v6, v5, 4, v6
    v_bfe_u32 v5, v{vL}, 3, 2
    v_lshl_add_u32 v6, v5, 2, v6
    v_cvt_f32_u32 v6, v6
    v_mul_f32 v5, {f32hex(1/32.0)}, v6
    v_mul_f32 v5, v5, v2
    v_cos_f32 v{DR}, v5
    v_sin_f32 v{DR+1}, v5
    v_mul_f32 v5, {f32hex(1/1024.0)}, v6
    v_mul_f32 v6, v5, v3
    v_add_f32 v7, v6, v5
    v_cos_f32 v{K+4}, v6
    v_sin_f32 v{K+5}, v6
    v_cos_f32 v{K+6}, v7
    v_sin_f32 v{K+7}, v7
    v_cvt_pk_bf16_f32 v{K}, v{DR}, -v{DR+1}
    v_cvt_pk_bf16_f32 v{K+1}, v{DR+1}, v{DR}
    v_and_b32 v2, 31, v{vL}
    v_lshlrev_b32 v5, 6, v2
    v_lshl_add_u32 v{vX}, v4, 5, v5
    s_lshl_b32 s{sRow}, s{sW}, 8
    s_add_u32 s{sRow}, s{sRow}, s2
    s_lshl_b32 s{sRow}, s{sRow}, 11
    s_mov_b32 s{sT1}, 16384
    s_waitcnt lgkmcnt(0)
    ''')
    srd(a, SZ, 36, 37, WS_Z2, 4 << 20)
    a(f'''
    s_cmp_eq_u32 s94, 0
    s_cbranch_scc0 {base}_later
    buffer_load_dwordx4 {vr(ZR, 4)}, v{vZ}, s[{SZ}:{SZ+3}], 0 offen
    buffer_load_dwordx4 {vr(ZR + 4, 4)}, v{vZ}, s[{SZ}:{SZ+3}], s{sT1} offen
    s_add_u32 s40, s36, {hex(WS_X2)}
    s_addc_u32 s41, s37, 0
    s_cmp_eq_u32 s38, 0
    s_cselect_b32 s40, s32, s40
    s_cselect_b32 s41, s33, s41
    ''')
    srd(a, SX, 40, 41, 0, 4 << 20)
    a(f'''
    buffer_load_dwordx4 {vr(XR,4)}, v{vX}, s[{SX}:{SX+3}], s{sRow} offen
    buffer_load_dwordx4 {vr(XR+4,4)}, v{vX}, s[{SX}:{SX+3}], s{sRow} offen offset:16
    ''')
    a.label(f'{base}_later')
    a(f'''
    v_cvt_f32_u32 v5, v2
    v_mul_f32 v5, {f32hex(1/32.0)}, v5
    v_mul_f32 v6, v5, v3
    v_add_f32 v7, v6, v5
    v_cos_f32 v{DR}, v6
    v_sin_f32 v{DR+1}, v6
    v_cos_f32 v{DR+2}, v7
    v_sin_f32 v{DR+3}, v7
    s_lshr_b32 s{sT0}, s{sW}, 2
    s_lshl_b32 s{sT0}, s{sT0}, 10
    s_and_b32 s{sT1}, s{sW}, 3
    s_lshl_b32 s{sT1}, s{sT1}, 2
    s_add_u32 s{sT0}, s{sT0}, s{sT1}
    v_add_u32 v1, s{sT0}, v{vTB}
    ds_write_b32 v1, v{K}
    ds_write_b32 v1, v{K+1} offset:2048
    v_cvt_pk_bf16_f32 v{K+2}, v{DR}, -v{DR+1}
    v_cvt_pk_bf16_f32 v{K+3}, v{DR+2}, -v{DR+3}
    s_lshr_b32 s{sT0}, s{sW}, 1
    s_lshl_b32 s{sT0}, s{sT0}, 10
    s_and_b32 s{sT1}, s{sW}, 1
    s_lshl_b32 s{sT1}, s{sT1}, 3
    s_add_u32 s{sT0}, s{sT0}, s{sT1}
    v_add_u32 v1, s{sT0}, v{vTB}
    ds_write_b64 v1, {vr(K+2,2)} offset:4096
    s_lshl_b32 s{sT0}, s{sW}, 10
    v_add_u32 v1, s{sT0}, v{vTB}
    ds_write_b128 v1, {vr(K+4,4)} offset:8192
    v_lshl_add_u32 v3, v4, 7, v2
    v_lshlrev_b32 v3, 2, v3
    s_mul_i32 s{sT0}, s{sW}, {P3_RS}
    s_add_u32 s{sT0}, s{sT0}, {P3_E}
    v_add_u32 v{vER}, s{sT0}, v3
    v_lshrrev_b32 v3, 4, v{vL}
    v_mul_u32_u24 v5, {2 * P3_RS}, v3
    v_and_b32 v6, 15, v{vL}
    v_lshl_add_u32 v5, v6, 4, v5
    s_lshl_b32 s{sT0}, s{sW}, 8
    s_add_u32 s{sT0}, s{sT0}, {P3_E}
    v_add_u32 v{vEW}, s{sT0}, v5
    v_lshlrev_b32 v5, 6, v6
    v_lshl_add_u32 v{vXS}, v3, 4, v5
    s_and_b32 s{sT0}, s2, 7
    s_lshl_b32 s{sT0}, s{sT0}, 5
    s_lshr_b32 s{sT1}, s2, 3
    s_add_u32 s{sT0}, s{sT0}, s{sT1}
    s_lshr_b32 s{sT1}, s{sT0}, 2
    s_sub_u32 s{sT1}, 0, s{sT1}
    s_and_b32 s{sT1}, s{sT1}, 3
    v_xor_b32 v3, s{sT1}, v3
    v_lshlrev_b32 v3, 4, v3
    v_lshl_add_u32 v3, v6, 14, v3
    s_lshl_b32 s{sT0}, s{sT0}, 6
    s_lshl_b32 s{sT1}, s{sW}, 19
    s_add_u32 s{sT0}, s{sT0}, s{sT1}
    v_add_u32 v{vLN}, s{sT0}, v3
    ''')
    a(f'''
    s_lshl_b32 s{sT0}, s2, 7
    s_add_u32 s{sT0}, s{sT0}, {hex(WS_FL)}
    ''')
    srd(a, S1, 36, 37, f's{sT0}', 65536)
    a(f'''
    v_lshlrev_b32 v1, 2, v{vL}
    v_and_b32 v2, 32, v{vL}
    s_xor_b32 s{sT1}, s38, 1
    s_mul_i32 s{sT1}, s{sT1}, {1020}
    v_mul_u32_u24 v2, s{sT1}, v2
    v_add_u32 v1, v1, v2
    s_lshl_b32 s{sT0}, s{sW}, 16
    v_add_u32 v1, s{sT0}, v1
    v_mov_b32 v2, 0
    s_lshl_b32 s{sT1}, s38, 16
    s_sub_u32 s{S1+2}, s{S1+2}, s{sT1}
    s_max_u32 s{S1+2}, s{S1+2}, 128
    buffer_store_dword v2, v1, s[{S1}:{S1+3}], 0 offen sc1
    ''')
    radix8_const(a, R8, vL, 1, +1, scale=2.0 / (2048 * 1024))
    a(f'''
    s_mul_i32 s{sT0}, s38, {WS_XB - WS_X1}
    s_add_u32 s{sT0}, s{sT0}, {hex(WS_X1)}
    ''')
    srd(a, S1, 36, 37, f's{sT0}', 4 << 20)
    srd(a, SL, 36, 37, WS_LNX, 4 << 20)
    a(f'''
    s_cmp_eq_u32 s94, 0
    s_cbranch_scc1 {base}_w_go
    s_lshl_b32 s{sT0}, s{sW}, 11
    s_add_u32 s{sT0}, s{sT0}, {LDS_STASH}
    v_add_u32 v1, s{sT0}, v{vX}
    ds_read_b128 {vr(XR,4)}, v1
    ds_read_b128 {vr(XR+4,4)}, v1 offset:16
    ''')
    wait_all(a, 1, f'{base}_w2', sW, SX, 2)
    a(f'''
    s_mov_b32 s{sT1}, 16384
    buffer_load_dwordx4 {vr(ZR, 4)}, v{vZ}, s[{SZ}:{SZ+3}], 0 offen
    buffer_load_dwordx4 {vr(ZR + 4, 4)}, v{vZ}, s[{SZ}:{SZ+3}], s{sT1} offen
    s_waitcnt vmcnt(0)
    ''')
    a.label(f'{base}_w_go')
    if stamp:
        a('s_memtime s[54:55]')
    a('s_waitcnt vmcnt(3)')
    for m in range(4):
        a(f'v_mov_b32 v{BOP + 2*m}, v{ZR + m}')
        a(f'v_mov_b32 v{BOP + 2*m + 1}, v{ZR + 4 + m}')
    for m in range(4):
        a(f'v_mfma_f32_16x16x16_bf16 {vr(DR + 4*m, 4)}, {vr(R8, 2)}, {vr(BOP + 2*m, 2)}, 0')
    for m in range(4):
        a(f'v_cvt_pk_bf16_f32 v{ZR + m}, v{DR + 4*m}, v{DR + 4*m + 1}')
        a(f'v_cvt_pk_bf16_f32 v{ZR + 4 + m}, v{DR + 4*m + 2}, v{DR + 4*m + 3}')
    a(f'''
    ds_write_b128 v{vEW}, {vr(ZR, 4)}
    ds_write_b128 v{vEW}, {vr(ZR + 4, 4)} offset:{P3_RS}
    v_add_u32 v7, 1024, v{vER}
    s_waitcnt lgkmcnt(0)
    s_barrier
    ds_read2_b32 {vr(BOP, 2)}, v{vER} offset0:0 offset1:32
    ds_read2_b32 {vr(BOP + 2, 2)}, v{vER} offset0:64 offset1:96
    ds_read2_b32 {vr(BOP + 4, 2)}, v7 offset0:0 offset1:32
    ds_read2_b32 {vr(BOP + 6, 2)}, v7 offset0:64 offset1:96
    ''')
    for g in (0, 2, 1, 3):
        a(f'ds_read_b128 {vr(CT + 4*g, 4)}, v{vTB} offset:{g * 1024}')
    for g in range(8):
        a(f'ds_read_b128 {vr(TW + 4*g, 4)}, v{vTB} offset:{(8 + g) * 1024}')
    a(f'''
    s_waitcnt lgkmcnt(12)
    v_readlane_b32 s24, v{BOP}, 0
    v_writelane_b32 v{BOP}, 0, 0
    ''')
    for q in range(2):
        a(f's_waitcnt lgkmcnt({10 - 2*q})')
        for (d, c) in ((DR, CR), (DI, CI)):
            cc = '0' if q == 0 else vr(d, 16)
            a(f'v_mfma_f32_32x32x16_bf16 {vr(d,16)}, {vr(BOP + 4*q, 4)}, {vr(c + 4*q, 4)}, {cc}')
    for g in range(4):
        a(f'ds_read_b128 {vr(C2 + 4*g, 4)}, v{vTB} offset:{(4 + g) * 1024}')
    a('s_lshl_b32 s24, s24, 16')
    a('v_mul_f32_e64 v5, 0.5, s24')
    a('s_waitcnt lgkmcnt(4)')
    P = ZR

    def yinit(r0):
        if r0 == 8:
            for r in range(16):
                if r & 1:
                    a(f'v_sub_f32 v{Y + r}, 0, v5')
                else:
                    a(f'v_mov_b32 v{Y + r}, v5')
    twiddle(a, DR, DI, TW, P, True, 1, ST, hook=yinit)
    a('s_waitcnt lgkmcnt(0)')
    for q in range(4):
        a(f'v_mfma_f32_32x32x16_bf16 {vr(Y, 16)}, {vr(P + 4*q, 4)}, {vr(C2 + 4*q, 4)}, {vr(Y, 16)}')
    if stamp:
        a('s_memtime s[56:57]')
    a('s_waitcnt vmcnt(0)')
    XF = DR
    for c in range(8):
        a(f'v_lshlrev_b32 v{XF + 2*c}, 16, v{XR + c}')
        a(f'v_and_b32 v{XF + 2*c + 1}, 0xffff0000, v{XR + c}')
    for c in range(8):
        a(f'v_cvt_pk_bf16_f32 v{ZR + c}, v{Y + 2*c}, v{Y + 2*c + 1}')
    for c in range(8):
        a(f'v_lshlrev_b32 v{Y + 2*c}, 16, v{ZR + c}')
        a(f'v_and_b32 v{Y + 2*c + 1}, 0xffff0000, v{ZR + c}')
    for c in range(8):
        a(f'v_pk_add_f32 {vr(XF + 2*c, 2)}, {vr(XF + 2*c, 2)}, {vr(Y + 2*c, 2)}')
    for c in range(8):
        a(f'v_cvt_pk_bf16_f32 v{XR + c}, v{XF + 2*c}, v{XF + 2*c + 1}')
    for c in range(8):
        a(f'v_lshlrev_b32 v{XF + 2*c}, 16, v{XR + c}')
        a(f'v_and_b32 v{XF + 2*c + 1}, 0xffff0000, v{XR + c}')
    for c in range(4):
        a(f'v_permlane16_swap_b32 v{XR + c}, v{XR + 4 + c}')
    a(f'buffer_store_dwordx4 {vr(XR, 4)}, v{vXS}, s[{S1}:{S1+3}], s{sRow} offen{SC1}')
    a(f'buffer_store_dwordx4 {vr(XR + 4, 4)}, v{vXS}, s[{S1}:{S1+3}], s{sRow} offen offset:1024{SC1}')
    ln_stats(a, XF, ST, None)
    a(f'v_add_f32 v{ST}, v{ST}, v{ST + 1}')
    wave_reduce(a, [ST, ST + 2], [24, 26])
    a('s_mov_b32 s25, 0')
    ln_finish(a, 24, 25, 26, ST)
    for c in range(8):
        a(f'v_pk_fma_f32 {vr(XF + 2*c, 2)}, {vr(XF + 2*c, 2)}, {vr(ST,2)}, {vr(ST+2,2)} op_sel_hi:[1,0,0]')
    for i, c in enumerate([0, 1, 4, 5, 2, 3, 6, 7]):
        a(f'v_cvt_pk_bf16_f32 v{ZR + i}, v{XF + 2*c}, v{XF + 2*c + 1}')
    a(f's_mov_b32 s{sT0}, {16 << 14}')
    for c in range(4):
        a(f'v_permlane16_swap_b32 v{ZR + c}, v{ZR + 4 + c}')
    a(f'buffer_store_dwordx4 {vr(ZR, 4)}, v{vLN}, s[{SL}:{SL+3}], 0 offen{SC1}')
    a(f'buffer_store_dwordx4 {vr(ZR + 4, 4)}, v{vLN}, s[{SL}:{SL+3}], s{sT0} offen{SC1}')
    a('s_cmp_eq_u32 s94, 0')
    a(f's_cbranch_scc1 {base}_fin')
    arrive(a, 2, 2, 'mlp_fused')
    a.label(f'{base}_fin')
    if stamp:
        stamp_out(a, sW, 36)
    a.label(f'{base}_end')
    a('s_endpgm')
    items = [(KA_WG, PF1 + PF2, PF3), (KA_WU, PF1 + PF2, PF3)]
    prefetch_role(a, f'{base}_pf', f'{base}_end', items)
    return (''.join(descriptor(n, 128, NSG, 128) for n in names), [(n, 256 + PF_WGS * (n == names[0]), 512, P3_LDS) for n in names])


def gen_l2(a, name='l2_kernel', stamp=False):
    from gen_g2f import G2F_LDS
    kernel_start(a, name)
    if stamp:
        a('s_memtime s[50:51]\ns_memrealtime s[52:53]')
    a(f'''
    s_cmp_ge_u32 s2, 256
    s_cbranch_scc1 {name}_end
    s_mov_b32 s94, 1
    v_mov_b32 v250, v0
    s_branch p1_fused
    ''')
    a.label(f'{name}_end')
    a('s_endpgm')
    return descriptor(name, 256, NSG, 256), (name, 256, 512, G2F_LDS + 16384 + 1024)
```

```python
from build import *
from gen_p2 import *
import functools
P = functools.partial
LIST_M = ['p1a_kernel', 'p2a_kernel', 'p3a_kernel', 'mlpa_kernel', 'p1b_kernel', 'p2b_kernel', 'p3b_kernel', 'mlpb_kernel']
LIST_L = LIST_M[:4] + ['l2_kernel']
GENS = (gen_p1, gen_p2, gen_p3, P(gen_g1, name='mlp', fused=('mlpa_kernel', 'mlpb_kernel')), gen_l2)
if __name__ == '__main__':
    assemble(GENS, LIST_M, 'mlp.s')
    assemble([P(g, stamp=True) for g in GENS], LIST_M, 'mlp_st.s')
    assemble(GENS, LIST_L, 'l2.s')
    assemble([P(g, stamp=True) for g in GENS], LIST_L, 'l2_st.s')
```
